```python
import torch

def _softmax(x, axis=-1):
    return torch.softmax(x, dim=axis)
def _gelu(x):
    return torch.nn.functional.gelu(x, approximate="tanh")
def _silu(x):
    return torch.nn.functional.silu(x)
def _sigmoid(x):
    return torch.sigmoid(x)
def _layernorm(x, axis=-1, eps=1e-5):
    m = x.mean(dim=axis, keepdim=True)
    v = x.var(dim=axis, keepdim=True, unbiased=False)
    return (x - m) / torch.sqrt(v + eps)
def _scatter_add(tgt, idx, src, axis=0):
    return tgt.clone().index_add_(axis, idx, src)
def _segment_sum(src, seg, n):
    out = torch.zeros((n,) + src.shape[1:], dtype=src.dtype)
    return out.index_add_(0, seg, src)
def _pad(x, pw):
    flat = tuple(v for pair in reversed(pw) for v in pair)
    return torch.nn.functional.pad(x, flat)

kernel_name = 'sequential_preLN__compressed_kv_cla__mixer_token_mlp__prompt'

def setup_inputs():

    _w = (lambda a: (lambda t: t.to(torch.bfloat16) if t.is_floating_point() else t)(torch.as_tensor(a)))
    def _A_setup():
        B, H, Sq, Sk, D, M = 1, 32, 2048, 2048, 128, 576
        Dc = 4 * D
        return {
            "x": _w((lambda *s: torch.randn(*s, dtype=torch.bfloat16) * 0.05)(B, Sq, M)),
            "c_kv": _w((lambda *s: torch.randn(*s, dtype=torch.bfloat16) * 0.2)(B, Sk, Dc)),
            "w_q": _w((lambda *s: torch.randn(*s, dtype=torch.bfloat16) * 3.2)(M, H, D) * (M ** -0.5)),
            "w_uk": _w((lambda *s: torch.randn(*s, dtype=torch.bfloat16) * 6.4)(Dc, H, D) * (Dc ** -0.5)),
            "w_uv": _w((lambda *s: torch.randn(*s, dtype=torch.bfloat16) * 0.2)(Dc, H, D) * (Dc ** -0.5)),
            "w_o": _w((lambda *s: torch.randn(*s, dtype=torch.bfloat16) * 0.2)(H, D, M) * ((H * D) ** -0.5)),
        }
    _A_in = _A_setup()

    def _B_setup():
        B, S, D, F = 1, 2048, 576, 4608
        return {
            "x": _w((lambda *s: torch.randn(*s, dtype=torch.bfloat16) * 0.05)(B, S, D)),
            "w1": _w((lambda *s: torch.randn(*s, dtype=torch.bfloat16) * 0.4)(S, F) * (S ** -0.5)),
            "b1": _w((lambda *s: torch.randn(*s, dtype=torch.bfloat16) * 3.2)(F) * 0.02),
            "w2": _w((lambda *s: torch.randn(*s, dtype=torch.bfloat16) * 0.2)(F, S) * (F ** -0.5)),
            "b2": _w((lambda *s: torch.randn(*s, dtype=torch.bfloat16) * 0.8)(S) * 0.02),
        }
    _B_in = _B_setup()

    return {
        "A_x": _A_in["x"],
        "A_c_kv": _A_in["c_kv"],
        "A_w_q": _A_in["w_q"],
        "A_w_uk": _A_in["w_uk"],
        "A_w_uv": _A_in["w_uv"],
        "A_w_o": _A_in["w_o"],
        "B_x": _B_in["x"],
        "B_w1": _B_in["w1"],
        "B_b1": _B_in["b1"],
        "B_w2": _B_in["w2"],
        "B_b2": _B_in["b2"],
    }

def reference(A_x, A_c_kv, A_w_q, A_w_uk, A_w_uv, A_w_o, B_x, B_w1, B_b1, B_w2, B_b2):
    def _A_ref(x, c_kv, w_q, w_uk, w_uv, w_o):
        B, Sq, M = x.shape[0], x.shape[1], x.shape[2]
        Sk = c_kv.shape[1]
        H, D = w_q.shape[1], w_q.shape[2]
        q = torch.einsum("bqm,mhd->bhqd", x, w_q)
        k = torch.einsum("bkc,chd->bhkd", c_kv, w_uk)
        v = torch.einsum("bkc,chd->bhkd", c_kv, w_uv)
        scores = torch.einsum("bhqd,bhkd->bhqk", q, k) * (D ** -0.5)
        off = Sk - Sq
        qi = torch.arange(Sq)[:, None]
        kj = torch.arange(Sk)[None, :]
        cmask = kj <= (qi + off)
        scores = torch.where(cmask[None, None], scores, -1e9)
        p = _softmax(scores, axis=-1)
        ctx = torch.einsum("bhqk,bhkd->bhqd", p, v)
        return torch.einsum("bhqd,hdm->bqm", ctx, w_o)

    def _B_ref(x, w1, b1, w2, b2):
        B, S, D = x.shape
        h = _layernorm(x, axis=-1)
        u = torch.einsum("bsd,sf->bdf", h, w1) + b1
        u = _gelu(u)
        y = torch.einsum("bdf,fs->bds", u, w2) + b2
        return (lambda x, *d: x.permute(*d))(y, 0, 2, 1)

    x = A_x
    h = x + _A_ref(_layernorm(x, axis=-1), A_c_kv, A_w_q, A_w_uk, A_w_uv, A_w_o)
    h2 = h + _B_ref(_layernorm(h, axis=-1), B_w1, B_b1, B_w2, B_b2)
    return h2
```

```python
L=[]
def e(s): L.append(s)
XN,KB,VT,CTX,HB,HN,UB=0,0x400000,0x1400000,0x2400000,0x3400000,0x3800000,0x3C00000
SZ_X=2048*576*2
_lab=[0]
def lab(p='L'):
    _lab[0]+=1; return f'{p}_{_lab[0]}'
def srd(d,slot,off,size):
    e(f's_load_dwordx2 s[{d}:{d+1}], s[0:1], {slot*8}')
    return (d,off,size)
def srd_fin(lst):
    e('s_waitcnt lgkmcnt(0)')
    for d,off,size in lst:
        if off: e(f's_add_u32 s{d}, s{d}, {hex(off)}'); e(f's_addc_u32 s{d+1}, s{d+1}, 0')
        e(f's_mov_b32 s{d+2}, {hex(size)}'); e(f's_mov_b32 s{d+3}, 0x00020000')
def begin(name,nwg):
    e(f'.text\n.globl {name}\n.p2align 8\n.type {name},@function\n{name}:')
    e(f's_cmp_ge_u32 s2, {nwg}'); e(f's_cbranch_scc0 {name}_go'); e('s_endpgm'); e(f'{name}_go:')
    e('v_lshrrev_b32 v1, 6, v0'); e('v_and_b32 v0, 63, v0'); e('s_nop 0'); e('v_readfirstlane_b32 s3, v1')
def end(name,nv,acc):
    e('s_endpgm')
    e(f'.section .rodata,"a"\n.p2align 6\n.amdhsa_kernel {name}\n  .amdhsa_next_free_vgpr {nv}\n  .amdhsa_next_free_sgpr 96\n  .amdhsa_accum_offset {acc}\n  .amdhsa_group_segment_fixed_size 0\n  .amdhsa_kernarg_size 112\n  .amdhsa_user_sgpr_count 2\n  .amdhsa_user_sgpr_kernarg_segment_ptr 1\n  .amdhsa_system_sgpr_workgroup_id_x 1\n.end_amdhsa_kernel')
def mfma(d,a,b,c=None):
    e(f'v_mfma_f32_32x32x16_bf16 {d}, {a}, {b}, {c if c is not None else d}')
def R(p,i,n): return f'{p}[{i}:{i+n-1}]'
def interleave(main,fill,per=None):
    n=len(main); m=len(fill); j=0
    for i,x in enumerate(main):
        e(x)
        t=((i+1)*m+n-1)//n if per is None else min(m,(i+1)*per)
        while j<t:
            for y in fill[j]: e(y)
            j+=1
    while j<m:
        for y in fill[j]: e(y)
        j+=1

class Op:
    def __init__(s,kind,N,KST,stride,srd,soff,nb,perm=False):
        s.kind,s.N,s.KST,s.stride,s.srd,s.soff,s.nb,s.perm=kind,N,KST,stride,srd,soff,nb,perm
        s.bytes=N*KST*2; s.nd=s.bytes//1024
        s.kadv = KST*2 if kind=='kc' else KST*stride
    def dma_setup(s,vb,pieces,spiece,t0,t1,t2):
        s.vd=vb; s.pieces=pieces
        for n,i in enumerate(pieces):
            e(f'v_add_u32 v{t0}, {i*64}, v0')
            if spiece: e(f'v_lshl_add_u32 v{t0}, {spiece}, 6, v{t0}')
            cpr=(s.KST if s.kind=='kc' else s.N)//8
            if cpr==12:
                e(f'v_mul_u32_u24 v{t1}, 0x5556, v{t0}'); e(f'v_lshrrev_b32 v{t1}, 18, v{t1}')
                e(f'v_mul_u32_u24 v{t2}, 12, v{t1}'); e(f'v_sub_u32 v{t0}, v{t0}, v{t2}')
            else:
                lg=cpr.bit_length()-1
                e(f'v_lshrrev_b32 v{t1}, {lg}, v{t0}'); e(f'v_and_b32 v{t0}, {cpr-1}, v{t0}')
                if s.kind=='kc':
                    sh={4:2,8:1,16:0}[cpr]; e(f'v_bfe_u32 v{t2}, v{t1}, {sh}, {lg}')
                elif cpr==8: e(f'v_bfe_u32 v{t2}, v{t1}, 1, 1'); e(f'v_lshlrev_b32 v{t2}, 2, v{t2}')
                else: e(f'v_and_b32 v{t2}, 3, v{t1}'); e(f'v_lshlrev_b32 v{t2}, 2, v{t2}')
                e(f'v_xor_b32 v{t0}, v{t0}, v{t2}')
            e(f'v_mul_u32_u24 v{t1}, {s.stride}, v{t1}'); e(f'v_lshl_add_u32 v{vb+n}, v{t0}, 4, v{t1}')
        return vb+len(pieces)
    def rd_setup(s,vb,sbase,t0,t1,t2):
        s.va=vb; v=s._rd(vb,sbase,t0,t1,t2); s.nra=v-vb
        pg=getattr(s,'pages',[0]); s.pg=pg
        for k in range(len(pg)-1,-1,-1):
            for r in range(s.nra):
                if pg[k]: e(f'v_add_u32 v{vb+k*s.nra+r}, {pg[k]*65536}, v{vb+r}')
        return vb+len(pg)*s.nra
    def _rd(s,vb,sbase,t0,t1,t2):
        if s.kind=='kc':
            cpr=s.KST//8; lg=cpr.bit_length()-1; sh={4:2,8:1,16:0}[cpr]
            e(f'v_and_b32 v{t0}, 31, v0'); e(f'v_bfe_u32 v{t1}, v0, {sh}, {lg}'); e(f'v_lshrrev_b32 v{t2}, 5, v0')
            e(f'v_xor_b32 v{t1}, v{t1}, v{t2}'); e(f'v_lshlrev_b32 v{t1}, 4, v{t1}')
            e(f'v_mul_u32_u24 v{t0}, {s.KST*2}, v{t0}'); e(f'v_add_u32 v{t0}, v{t0}, v{t1}')
            n=s.KST//16
            for ks in range(n):
                e(f'v_xor_b32 v{vb+ks}, {ks*32}, v{t0}'); e(f'v_add_u32 v{vb+ks}, {sbase}, v{vb+ks}')
            return vb+n
        rb=s.N*2
        e(f'v_bfe_u32 v{t0}, v0, 2, 2'); e(f'v_lshrrev_b32 v{t1}, 5, v0')
        e(f'v_lshl_add_u32 v{t1}, v{t1}, {2 if s.perm else 3}, v{t0}'); e(f'v_mul_u32_u24 v{t1}, {rb}, v{t1}')
        e(f'v_bfe_u32 v{t2}, v0, 4, 1'); e(f'v_lshl_add_u32 v{t1}, v{t2}, 5, v{t1}')
        e(f'v_and_b32 v{t2}, 3, v0'); e(f'v_lshl_add_u32 v{t1}, v{t2}, 3, v{t1}'); e(f'v_add_u32 v{t1}, {sbase}, v{t1}')
        if s.N==96: e(f'v_mov_b32 v{vb}, v{t1}'); s.nx=1; return vb+1
        if s.N==64: e(f'v_lshrrev_b32 v{t0}, 1, v{t0}'); s.nx=2
        else: s.nx=min(4,s.nb)
        for b in range(s.nx):
            bb=b+getattr(s,'bx',0)
            if isinstance(getattr(s,'sbx',None),str):
                e(f'v_xor_b32 v{t2}, {s.sbx}, v{t0}'); e(f'v_xor_b32 v{t2}, {b}, v{t2}')
            else: e(f'v_xor_b32 v{t2}, {bb}, v{t0}')
            e(f'v_lshl_add_u32 v{vb+b}, v{t2}, 6, v{t1}')
        return vb+s.nx
    def reads(s,off,ks,fr,p='v'):
        g=[]; va=s.va+s.pg.index(off>>16)*s.nra; off&=65535
        for b in range(s.nb):
            if s.kind=='kc':
                g.append([f'ds_read_b128 {R(p,fr+4*b,4)}, v{va+ks} offset:{off+b*32*s.KST*2}'])
            else:
                rb=s.N*2
                for t in range(2):
                    o=off+(ks*16+t*(8 if s.perm else 4))*rb+(b*64 if s.N==96 else 0)
                    g.append([f'ds_read_b64_tr_b16 {R(p,fr+4*b+2*t,2)}, v{va+(b%s.nx)} offset:{o}'])
        return g
    def dmas(s,sm0,off):
        return [[f's_add_u32 m0, {sm0}, {off+n*1024}', 's_nop 0', f'buffer_load_dwordx4 v{s.vd+n}, s[{s.srd}:{s.srd+3}], s{s.soff} offen lds'] for n in range(len(s.pieces))]

def gemm_loop(A,B,nst,nslot,slotb,offA,offB,smA,smB,fr,shared,kmul,mid=None):
    nks=A.KST//16; nd=len(A.pieces)+len(B.pieces); fs=4*(A.nb+B.nb)
    h1 = nd if nks==1 else nd//2
    def issue(slot,part):
        g=A.dmas(smA,slot*slotb+offA)+B.dmas(smB,slot*slotb+offB)
        adv=[[f's_add_u32 s{A.soff}, s{A.soff}, {A.kadv*kmul}',f's_add_u32 s{B.soff}, s{B.soff}, {B.kadv*kmul}']]
        if nks==1: return g+adv if part==0 else []
        return g[:h1] if part==0 else g[h1:]+adv
    def rd(slot,ks,st): return A.reads(slot*slotb+offA,ks,fr+st*fs)+B.reads(slot*slotb+offB,ks,fr+st*fs+4*A.nb)
    def mm(st):
        return [f'v_mfma_f32_32x32x16_bf16 {R("a",16*(i*B.nb+j),16)}, {R("v",fr+st*fs+4*i,4)}, {R("v",fr+st*fs+4*A.nb+4*j,4)}, {R("a",16*(i*B.nb+j),16)}' for i in range(A.nb) for j in range(B.nb)]
    for sl in range(nslot):
        for g in issue(sl,0)+(issue(sl,1) if sl<nslot-1 else []):
            for y in g: e(y)
    for i in range(16*A.nb*B.nb): e(f'v_accvgpr_write_b32 a{i}, 0')
    if mid: mid()
    e(f's_waitcnt vmcnt({nd*(nslot-2)+h1})')
    if shared: e('s_barrier')
    for g in rd(0,0,0):
        for y in g: e(y)
    def body(refill,last):
        st=0
        for sl in range(nslot):
            for ks in range(nks):
                rds=[];dm=[]
                e('s_waitcnt lgkmcnt(0)')
                if ks==nks-1:
                    fin = last and sl==nslot-1
                    if not fin:
                        left = nslot-2 if refill else nslot-2-sl
                        e(f's_waitcnt vmcnt({nd*left})')
                        if shared: e('s_barrier')
                        rds=rd((sl+1)%nslot,0,st^1)
                    if refill: dm=issue(sl,0)
                else:
                    rds=rd(sl,ks+1,st^1)
                    if ks==0 and (refill or sl==0): dm=issue((sl-1)%nslot,1)
                m=mm(st); n1=max(1,(len(m)*5)//8) if dm else max(1,(len(m)*3)//4)
                interleave(m[:n1],rds); interleave(m[n1:],dm)
                st^=1
        assert st==0
    assert nst%nslot==0
    lp=lab('gl')
    e(f's_mov_b32 s4, {nst//nslot-1}'); e(f'{lp}:')
    body(True,False)
    e('s_sub_u32 s4, s4, 1'); e('s_cmp_lg_u32 s4, 0'); e(f's_cbranch_scc1 {lp}')
    body(False,True)
    e('s_nop 7'); e('s_nop 7')

def ln_rows(ssrc,sdst,srow,vb,twice,wait='vmcnt(0)'):
    a=vb; raw=vb+2; f=vb+20; t=vb+56
    e(f'v_lshrrev_b32 v{a}, 4, v0'); e(f'v_add_u32 v{a}, {srow}, v{a}'); e(f'v_mul_u32_u24 v{a}, 1152, v{a}')
    e(f'v_and_b32 v{t}, 15, v0'); e(f'v_lshl_add_u32 v{a}, v{t}, 3, v{a}')
    for i in range(9): e(f'buffer_load_dwordx2 {R("v",raw+2*i,2)}, v{a}, s[{ssrc}:{ssrc+3}], 0 offen offset:{128*i}')
    e(f's_waitcnt {wait}')
    def red(r):
        for sft in (8,4,2,1):
            e('s_nop 1'); e(f'v_add_f32_dpp v{r}, v{r}, v{r} row_ror:{sft} row_mask:0xf bank_mask:0xf')
    for it in range(2 if twice else 1):
        for i in range(18):
            e(f'v_lshlrev_b32 v{f+2*i}, 16, v{raw+i}'); e(f'v_and_b32 v{f+2*i+1}, 0xffff0000, v{raw+i}')
        e(f'v_add_f32 v{t}, v{f}, v{f+1}')
        for i in range(2,36): e(f'v_add_f32 v{t}, v{t}, v{f+i}')
        red(t); e(f'v_mul_f32 v{t}, {fhex(1/576)}, v{t}')
        for i in range(36): e(f'v_sub_f32 v{f+i}, v{f+i}, v{t}')
        e(f'v_mul_f32 v{t}, v{f}, v{f}')
        for i in range(1,36): e(f'v_fmac_f32 v{t}, v{f+i}, v{f+i}')
        red(t); e(f'v_mov_b32 v{t+1}, {fhex(1e-5)}'); e(f'v_fmac_f32 v{t+1}, {fhex(1/576)}, v{t}')
        e(f'v_rsq_f32 v{t}, v{t+1}'); e('s_nop 0')
        for i in range(36): e(f'v_mul_f32 v{f+i}, v{f+i}, v{t}')
        for i in range(18): e(f'v_cvt_pk_bf16_f32 v{raw+i}, v{f+2*i}, v{f+2*i+1}')
    for i in range(9): e(f'buffer_store_dwordx2 {R("v",raw+2*i,2)}, v{a}, s[{sdst}:{sdst+3}], 0 offen offset:{128*i}')
import struct
def fhex(x): return hex(struct.unpack('<I',struct.pack('<f',x))[0])
```

```python
from g0 import *
def k_kv():
    n='kv_kernel'; begin(n,256)
    l=[srd(8,1,0,2048*1024),srd(12,3,0,512*8192),srd(16,4,0,512*8192),srd(20,13,KB,1<<24),srd(24,13,VT,1<<24),srd(28,0,0,SZ_X),srd(32,13,XN,SZ_X)]
    e('s_and_b32 s5, s2, 7'); e('s_lshr_b32 s6, s2, 3'); e('s_and_b32 s36, s6, 7'); e('s_lshr_b32 s6, s6, 3')
    e('s_and_b32 s7, s6, 1'); e('s_lshl_b32 s5, s5, 1'); e('s_add_u32 s37, s5, s7'); e('s_lshr_b32 s38, s6, 1')
    e('s_lshr_b32 s39, s3, 1'); e('s_and_b32 s40, s3, 1')
    e('s_lshl_b32 s41, s3, 2'); e('s_lshl_b32 s42, s3, 12')
    e('s_lshl_b32 s43, s36, 18'); e('s_lshl_b32 s44, s37, 9')
    e('s_lshl_b32 s47, s2, 3'); e('s_lshl_b32 s5, s3, 2'); e('s_add_u32 s47, s47, s5')
    srd_fin(l)
    e('s_cmp_eq_u32 s38, 1'); e('s_cbranch_scc1 kv_v')
    for isV in (0,1):
        if isV: e('kv_v:')
        C=Op('kc',256,32,1024,8,43,4); W=Op('tr',256,32,8192,16 if isV else 12,44,4)
        A,B=(C,W) if isV else (W,C); C.pages=[0,1]; W.pages=[0,1]
        v=A.dma_setup(4,range(4),'s41',1,2,3); v=B.dma_setup(v,range(4),'s41',1,2,3)
        for o,sw in ((A,39),(B,40)):
            e(f's_lshl_b32 s45, s{sw}, {13 if o.kind=="kc" else 8}'); v=o.rd_setup(v,'s45',1,2,3)
        def mid():
            x=lab(); e('s_cmp_ge_u32 s3, 2'); e(f's_cbranch_scc1 {x}'); ln_rows(28,32,'s47',100,False); e(f'{x}:')
        gemm_loop(A,B,16,4,32768,0,16384,'s42','s42',32,True,1,mid)
        RS=4096 if isV else 256; so=24 if isV else 20
        e(f'v_and_b32 v1, 31, v0'); e(f'v_mul_u32_u24 v1, {RS}, v1'); e('v_lshrrev_b32 v2, 5, v0'); e('v_lshl_add_u32 v1, v2, 4, v1')
        e(f's_lshl_b32 s5, s37, 1'); e(f's_add_u32 s5, s5, s{40 if isV else 39}'); e('s_lshl_b32 s5, s5, 19')
        e(f's_lshl_b32 s6, s36, 1'); e(f's_add_u32 s6, s6, s{39 if isV else 40}'); e(f's_lshl_b32 s6, s6, {8 if isV else 15}'); e('s_add_u32 s5, s5, s6')
        r=0
        for j in range(4):
            for i in range(4):
                for s in range(2):
                    t=8+12*(r%8); r+=1
                    for q in range(8): e(f'v_accvgpr_read_b32 v{t+q}, a{16*(i*4+j)+8*s+q}')
                    for q in range(4): e(f'v_cvt_pk_bf16_f32 v{t+8+q}, v{t+2*q}, v{t+2*q+1}')
                    e(f'buffer_store_dwordx4 {R("v",t+8,4)}, v1, s[{so}:{so+3}], s5 offen offset:{i*64+s*32}')
            e(f's_add_u32 s5, s5, {32*RS}')
        if not isV: e('s_endpgm')
    end(n,512,256)

def p_gemm(n,nwg,per,A,B,nst,nslot,srds,tile,epi,rounds):
    begin(n,nwg)
    l=[srd(*x) for x in srds]
    e('s_and_b32 s5, s2, 7'); e(f's_mul_i32 s5, s5, {per}'); e('s_lshr_b32 s6, s2, 3'); e('s_add_u32 s5, s5, s6')
    e('s_mul_i32 s36, s5, 0xaaab'); e('s_lshr_b32 s36, s36, 18'); e('s_mul_i32 s6, s36, 6'); e('s_sub_u32 s37, s5, s6')
    tile()
    for o in (A,B): e(f's_mul_i32 s5, s3, {o.kadv}'); e(f's_add_u32 s{o.soff}, s{o.soff}, s5')
    slotb=A.bytes+B.bytes
    e(f's_mul_i32 s42, s3, {slotb*nslot}')
    srd_fin(l)
    v=A.dma_setup(4,range(A.nd),None,1,2,3); v=B.dma_setup(v,range(B.nd),None,1,2,3)
    v=A.rd_setup(v,'s42',1,2,3); v=B.rd_setup(v,'s42',1,2,3); assert v<=32
    gemm_loop(A,B,nst,nslot,slotb,0,A.bytes,'s42','s42',32,False,4)
    nbr=A.nb//rounds; RW=32*nbr; cs=RW*4+16; wb=cs*32*B.nb; cpc=RW//8
    e(f'v_and_b32 v1, 31, v0'); e(f'v_mul_u32_u24 v1, {cs}, v1'); e('v_lshrrev_b32 v2, 5, v0'); e('v_lshl_add_u32 v1, v2, 4, v1')
    e(f's_mul_i32 s5, s3, {wb}'); e('v_add_u32 v1, s5, v1')
    e('v_lshl_add_u32 v2, s3, 6, v0')
    for k in range(3):
        e(f'v_add_u32 v3, {256*k}, v2')
        if cpc==12: e(f'v_mul_u32_u24 v{4+k}, 0x5556, v3'); e(f'v_lshrrev_b32 v{4+k}, 18, v{4+k}'); e(f'v_mul_u32_u24 v{8+k}, 12, v{4+k}'); e(f'v_sub_u32 v{8+k}, v3, v{8+k}')
        else: e(f'v_lshrrev_b32 v{4+k}, 3, v3'); e(f'v_and_b32 v{8+k}, 7, v3')
        e(f'v_mul_u32_u24 v{12+k}, {cs}, v{4+k}'); e(f'v_lshl_add_u32 v{12+k}, v{8+k}, 5, v{12+k}')
    e(f'v_add_u32 v15, {2*wb}, v12'); e(f'v_add_u32 v16, {2*wb}, v13'); e(f'v_add_u32 v17, {2*wb}, v14')
    for r in range(rounds):
        epi(r,'load')
        e('s_barrier')
        for i in range(nbr):
            for j in range(B.nb):
                for q in range(4): e(f'ds_write_b128 v1, {R("a",16*((r*nbr+i)*B.nb+j)+4*q,4)} offset:{j*32*cs+i*128+q*32}')
        e('s_waitcnt lgkmcnt(0)'); e('s_barrier')
        for k in range(3):
            for w in range(4):
                for hh in range(2): e(f'ds_read_b128 {R("v",64+32*k+8*w+4*hh,4)}, v{12+k+3*(w>>1)} offset:{(w&1)*wb+16*hh}')
        for k in range(3):
            e(f's_waitcnt lgkmcnt({min(15,8*(2-k))})')
            b=64+32*k
            for q in range(8): e(f'v_add_f32 v{b+q}, v{b+q}, v{b+8+q}'); e(f'v_add_f32 v{b+16+q}, v{b+16+q}, v{b+24+q}')
            for q in range(8): e(f'v_add_f32 v{b+q}, v{b+q}, v{b+16+q}')
            if k==0: e('s_waitcnt vmcnt(0)')
            epi(r,k)
    end(n,256+16*A.nb*B.nb,256)

def unpk(d,s):
    for q in range(4): e(f'v_lshlrev_b32 v{d+2*q}, 16, v{s+q}'); e(f'v_and_b32 v{d+2*q+1}, 0xffff0000, v{s+q}')
def res_epi(sres,sout,sbias):
    def epi(r,k):
        if k=='load':
            e('s_mul_i32 s5, s36, 73728'); e('s_mul_i32 s6, s37, 192'); e('s_add_u32 s5, s5, s6'); e('s_lshl_b32 s6, s36, 7')
            for k in range(3):
                e(f'v_mul_u32_u24 v{20+k}, 1152, v{4+k}'); e(f'v_lshl_add_u32 v{20+k}, v{8+k}, 4, v{20+k}')
                e(f'buffer_load_dwordx4 {R("v",32+4*k,4)}, v{20+k}, s[{sres}:{sres+3}], s5 offen')
                if sbias: e(f'v_lshlrev_b32 v3, 1, v{4+k}'); e(f'buffer_load_ushort v{24+k}, v3, s[{sbias}:{sbias+3}], s6 offen')
            return
        b=64+32*k
        if sbias:
            for q in range(4): e(f'v_cvt_pk_bf16_f32 v{b+8+q}, v{b+2*q}, v{b+2*q+1}')
            unpk(b,b+8); e(f'v_lshlrev_b32 v{24+k}, 16, v{24+k}')
            for q in range(8): e(f'v_add_f32 v{b+q}, v{b+q}, v{24+k}')
        for q in range(4): e(f'v_cvt_pk_bf16_f32 v{b+8+q}, v{b+2*q}, v{b+2*q+1}')
        unpk(b,b+8); unpk(b+16,32+4*k)
        for q in range(8): e(f'v_add_f32 v{b+q}, v{b+q}, v{b+16+q}')
        for q in range(4): e(f'v_cvt_pk_bf16_f32 v{b+8+q}, v{b+2*q}, v{b+2*q+1}')
        e(f'buffer_store_dwordx4 {R("v",b+8,4)}, v{20+k}, s[{sout}:{sout+3}], s5 offen')
    return epi
def k_oproj():
    A=Op('tr',96,32,1152,8,43,3,perm=True); B=Op('kc',64,32,8192,12,44,2)
    def tile(): e('s_mul_i32 s43, s37, 192'); e('s_lshl_b32 s44, s36, 19')
    p_gemm('op_kernel',192,24,A,B,32,4,[(8,5,0,4096*1152),(12,13,CTX,1<<24),(16,0,0,SZ_X),(20,13,HB,SZ_X)],tile,res_epi(16,20,None),1)
def k_w2():
    A=Op('kc',96,32,9216,8,43,3); B=Op('tr',64,32,4096,12,44,2)
    def tile(): e('s_mul_i32 s43, s37, 884736'); e('s_lshl_b32 s44, s36, 7')
    p_gemm('w2_kernel',192,24,A,B,36,4,[(8,13,UB,576*9216),(12,9,0,4608*4096),(16,13,HB,SZ_X),(20,11,0,SZ_X),(24,10,0,4096)],tile,res_epi(16,20,24),1)
def k_w1():
    A=Op('tr',128,16,9216,8,43,4); B=Op('tr',96,16,1152,12,44,3)
    def tile(): e('s_lshl_b32 s43, s36, 8'); e('s_mul_i32 s44, s37, 192')
    c1=-2*0.7978845608028654*1.4426950408889634
    def epi(r,k):
        if k=='load':
            e(f's_lshl_b32 s6, s36, 8'); e(f's_add_u32 s6, s6, {128*r}'); e('s_mul_i32 s5, s37, 884736'); e('s_add_u32 s5, s5, s6')
            e(f's_mov_b32 s7, {fhex(c1)}'); e('v_lshlrev_b32 v3, 4, v8'); e(f'buffer_load_dwordx4 v[32:35], v3, s[16:19], s6 offen')
            for k in range(3): e(f'v_mul_u32_u24 v{20+k}, 9216, v{4+k}'); e(f'v_lshl_add_u32 v{20+k}, v{8+k}, 4, v{20+k}')
            return
        b=64+32*k
        if k==0: unpk(40,32)
        for q in range(4): e(f'v_cvt_pk_bf16_f32 v{b+8+q}, v{b+2*q}, v{b+2*q+1}')
        unpk(b,b+8)
        for q in range(8): e(f'v_add_f32 v{b+q}, v{b+q}, v{40+q}')
        for q in range(8): e(f'v_mul_f32 v{b+8+q}, v{b+q}, v{b+q}')
        for q in range(8): e(f'v_mul_f32 v{b+8+q}, {fhex(c1*0.044715)}, v{b+8+q}')
        for q in range(8): e(f'v_add_f32 v{b+8+q}, s7, v{b+8+q}')
        for q in range(8): e(f'v_mul_f32 v{b+8+q}, v{b+8+q}, v{b+q}')
        for q in range(8): e(f'v_exp_f32 v{b+8+q}, v{b+8+q}')
        for q in range(8): e(f'v_add_f32 v{b+8+q}, 1.0, v{b+8+q}')
        for q in range(8): e(f'v_rcp_f32 v{b+8+q}, v{b+8+q}')
        for q in range(8): e(f'v_mul_f32 v{b+q}, v{b+q}, v{b+8+q}')
        for q in range(4): e(f'v_cvt_pk_bf16_f32 v{b+8+q}, v{b+2*q}, v{b+2*q+1}')
        e(f'buffer_store_dwordx4 {R("v",b+8,4)}, v{20+k}, s[20:23], s5 offen')
    p_gemm('w1_kernel',216,27,A,B,32,4,[(8,7,0,2048*9216),(12,13,HN,SZ_X),(16,8,0,9216),(20,13,UB,576*9216)],tile,epi,2)
def k_ln():
    n='ln_kernel'; begin(n,256)
    l=[srd(8,13,HB,SZ_X),srd(12,13,HN,SZ_X)]
    e('s_lshl_b32 s47, s2, 3'); e('s_lshl_b32 s5, s3, 2'); e('s_add_u32 s47, s47, s5')
    srd_fin(l); ln_rows(8,12,'s47',4,True); end(n,64,64)
```

```python
from g0 import *
SB=[64,96]; PP=48; CN=32; FP=128; LEAD=6
def kread(i,slot): kb,s=i>>3,i&7; return f'ds_read_b128 {R("v",FP+4*(i%8),4)}, v{4+s} offset:{slot*16384+kb*8192}'
def vread(i,slot): ks,db=(i-16)>>2,i&3; return f'ds_read_b128 {R("v",FP+4*(i%8),4)}, v{12+ks} offset:{32768+slot*16384+db*4096}'
def qk(i,S,c0): kb,s=i>>3,i&7; d=R("v",S+16*kb,16); return f'v_mfma_f32_32x32x16_bf16 {d}, {R("v",FP+4*(i%8),4)}, {R("a",64+4*s,4)}, {c0 if s==0 else d}'
def pv(i): ks,db=(i-16)>>2,i&3; d=R("a",16*db,16); return f'v_mfma_f32_32x32x16_bf16 {d}, {R("v",FP+4*(i%8),4)}, {R("v",PP+4*ks,4)}, {d}'
def expw(S,ks):
    r=S+8*ks; o=[]
    for q in range(0,8,2):
        o+=[f'v_exp_f32 v{r+q}, v{r+q}',f'v_exp_f32 v{r+q+1}, v{r+q+1}']
        if q: o+=[f'v_add_f32 v24, v24, v{r+q-2}',f'v_add_f32 v25, v25, v{r+q-1}',f'v_cvt_pk_bf16_f32 v{PP+4*ks+q//2-1}, v{r+q-2}, v{r+q-1}']
    return o,[f'v_add_f32 v24, v24, v{r+6}',f'v_add_f32 v25, v25, v{r+7}',f'v_cvt_pk_bf16_f32 v{PP+4*ks+3}, v{r+6}, v{r+7}']
def expseq(S,kss):
    o=[];tail=[]
    for ks in kss:
        a,t=expw(S,ks); o+=a[:2]+tail+a[2:]; tail=t
    return o,tail
def maxw(S):
    o=[f'v_max3_f32 v27, v{S}, v{S+1}, v{S+2}',f'v_max3_f32 v28, v{S+3}, v{S+4}, v{S+5}']
    for q in range(6,30,4): o+=[f'v_max3_f32 v27, v27, v{S+q}, v{S+q+1}',f'v_max3_f32 v28, v28, v{S+q+2}, v{S+q+3}']
    o+=[f'v_max3_f32 v27, v27, v{S+30}, v{S+31}','v_max_f32 v27, v27, v28','v_mov_b32 v28, v27']
    return o
SWAPMAX=['s_nop 1','v_permlane32_swap_b32 v28, v27','s_nop 1','v_max_f32 v27, v27, v28']
def maskw(S):
    e(f'v_mov_b32 v28, {fhex(-1e9)}')
    for g in range(0,32,4):
        for q in range(4):
            r=g+q; e(f'v_cmp_gt_i32 s[{52+2*q}:{53+2*q}], {32*(r>>4)+8*((r&15)>>2)+(r&3)}, v29')
        for q in range(4): e(f'v_cndmask_b32 v{S+g+q}, v{S+g+q}, v28, s[{52+2*q}:{53+2*q}]')
def dma(kind,slot):
    vb,sr,so,off,adv=(16,16,45,slot*16384,32768) if kind=='K' else (20,20,46,32768+slot*16384,256)
    o=[]
    for n in range(4): o+=[f's_add_u32 m0, s49, {off+n*1024}','s_nop 0',f'buffer_load_dwordx4 v{vb+n}, s[{sr}:{sr+3}], s{so} offen lds']
    return o+[f's_add_u32 s{so}, s{so}, {adv}']
def cdma(kind,slot):
    c=47 if kind=='K' else 48; x=lab()
    e(f's_cmp_lt_i32 s{c}, 1'); e(f's_cbranch_scc1 {x}')
    for y in dma(kind,slot): e(y)
    e(f'{x}:'); e(f's_sub_u32 s{c}, s{c}, 1')
def split(l,n): return [l[(i*len(l))//n:((i+1)*len(l))//n] for i in range(n)]
def iteration(p,tail):
    Sc,Sn=SB[p],SB[p^1]
    e1,t1=expseq(Sc,[0,1,2]); e2,t2=expseq(Sc,[3]); e2=e2[:2]+t1+e2[2:]+['s_nop 0']+t2
    fill={i:[] for i in range(32)}
    nxt=LEAD; start=0
    if tail:
        for i in range(16,16+LEAD): e(vread(i,p))
        for y in e1+e2[:5]: e(y)
        e2=e2[5:]; start=16; nxt=16+LEAD
        for i,g in enumerate(split(e2,6)): fill[16+i]=g
    else:
        for i,g in enumerate(split(e1,16)): fill[i]=g
        for i,g in enumerate(split(e2,6)): fill[16+i]=g
        for i,g in enumerate(split(maxw(Sn),8)): fill[22+i]=g
    for i in range(start,32):
        if i%2==0 and i<27: e(f's_waitcnt lgkmcnt({max(0,nxt-i-2)})')
        e(qk(i,Sn,R("v",CN,16)) if i<16 else pv(i))
        if nxt<32: e(kread(nxt,p^1) if nxt<16 else vread(nxt,p)); nxt+=1
        if i==21 and not tail:
            x=lab(); e('s_cmp_lg_u32 s40, 2'); e(f's_cbranch_scc1 {x}'); e('s_nop 4'); maskw(Sn); e(f'{x}:')
        if i==26:
            e('s_waitcnt lgkmcnt(0)')
            if not tail:
                e('s_waitcnt vmcnt(0)'); e('s_barrier')
                for j in range(3): e(kread(j,p))
        if 27<=i<24+LEAD and not tail: e(kread(i-24,p))
        if i==28 and not tail: cdma('K',p^1)
        if i==30 and not tail: cdma('V',p)
        for y in fill[i]: e(y)
    if not tail:
        for y in SWAPMAX: e(y)
        e(f'v_cmp_lt_f32 vcc, {fhex(8.0)}, v27'); e(f's_cbranch_vccnz at_rs{p}'); e(f'at_rb{p}:')
def rescale(p):
    Sn=SB[p^1]; e(f'at_rs{p}:')
    e('v_max_f32 v27, 0, v27'); e('v_add_f32 v26, v26, v27'); e('v_sub_f32 v28, 0, v27'); e('v_exp_f32 v28, v28')
    for q in range(32): e(f'v_sub_f32 v{Sn+q}, v{Sn+q}, v27')
    for q in range(16): e(f'v_sub_f32 v{CN+q}, 0, v26')
    e('v_mul_f32 v24, v24, v28'); e('v_mul_f32 v25, v25, v28')
    for g in range(0,64,4):
        for q in range(4): e(f'v_accvgpr_read_b32 v{PP+q}, a{g+q}')
        for q in range(4): e(f'v_mul_f32 v{PP+q}, v{PP+q}, v28')
        for q in range(4): e(f'v_accvgpr_write_b32 a{g+q}, v{PP+q}')
    e('s_nop 1'); e(f's_branch at_rb{p}')
def k_attn():
    n='at_kernel'; begin(n,256)
    l=[srd(8,13,XN,SZ_X),srd(12,2,0,576*8192),srd(16,13,KB,1<<24),srd(20,13,VT,1<<24),srd(24,13,CTX,1<<24)]
    e('s_and_b32 s5, s2, 7'); e('s_lshr_b32 s6, s2, 6'); e('s_lshl_b32 s5, s5, 2'); e('s_add_u32 s36, s5, s6')
    e('s_bfe_u32 s51, s2, 0x30003'); e('s_sub_u32 s37, 15, s51'); e('s_mov_b32 s41, 2')
    e('s_lshr_b32 s38, s3, 2'); e('s_and_b32 s39, s3, 3')
    e('s_lshl_b32 s5, s38, 16'); e('s_lshl_b32 s6, s39, 12'); e('s_add_u32 s49, s5, s6')
    e('s_lshl_b32 s50, s3, 11'); e('s_lshl_b32 s60, s3, 1'); e('s_lshl_b32 s61, s39, 2'); e('s_lshl_b32 s62, s38, 1')
    srd_fin(l)
    Ko=Op('kc',64,128,256,16,45,2); Vo=Op('kc',128,64,4096,20,46,4)
    Ko.rd_setup(4,'s5',1,2,3); Vo.rd_setup(12,'s5',1,2,3)
    Ko.dma_setup(16,range(4),'s61',1,2,3); Vo.dma_setup(20,range(4),'s61',1,2,3)
    e('v_and_b32 v1, 31, v0'); e('v_lshrrev_b32 v2, 5, v0'); e('v_lshl_add_u32 v29, s39, 5, v1'); e('v_lshlrev_b32 v30, 13, v29'); e('v_lshl_add_u32 v30, v2, 4, v30')
    e('v_lshlrev_b32 v2, 2, v2'); e('v_sub_u32 v29, v29, v2'); e('s_lshl_b32 s5, s38, 6'); e('v_subrev_u32 v29, s5, v29')
    e('at_blk:')
    X=Op('kc',128,64,1152,8,43,1); W=Op('tr',128,64,8192,12,44,2); X.pages=[0,2]; W.pages=[1,2]; W.sbx='s62'
    e('s_mul_i32 s43, s37, 147456'); e('s_lshl_b32 s44, s36, 8')
    e('s_lshl_b32 s5, s36, 19'); e('s_lshl_b32 s6, s38, 14'); e('s_add_u32 s45, s5, s6'); e('s_lshl_b32 s6, s38, 7'); e('s_add_u32 s46, s5, s6')
    e('s_add_u32 s40, s37, 1'); e('s_sub_u32 s47, s37, 1'); e('s_mov_b32 s48, s47')
    v=X.dma_setup(32,range(2),'s60',1,2,3); v=W.dma_setup(v,range(2),'s60',1,2,3)
    so=[(16384,81920),(32768,98304),(49152,114688),(131072,147456),(0,65536)]
    def qissue(t):
        for g in X.dmas('s50',so[t%5][0])+W.dmas('s50',so[t%5][1]):
            for y in g: e(y)
        e(f's_add_u32 s43, s43, {X.kadv}'); e(f's_add_u32 s44, s44, {W.kadv}')
    for t in range(5): qissue(t)
    e('s_lshl_b32 s5, s39, 12'); v=X.rd_setup(v,'s5',1,2,3); v=W.rd_setup(v,'0',1,2,3); assert v<=64
    for t in range(9):
        e(f's_waitcnt vmcnt({16 if t==0 else 12})'); e('s_barrier')
        for ks in range(4):
            for g in W.reads(so[t%5][1],ks,96+12*ks)+X.reads(so[t%5][0],ks,96+12*ks+8): e(g[0])
        if 1<=t<=4: qissue(t+4)
        elif t>=5:
            for y in dma('K' if t<7 else 'V',(t-5)&1): e(y)
        for ks in range(4):
            e(f's_waitcnt lgkmcnt({15-5*ks})')
            for b in range(2): mfma(R('v',64+16*b,16),R('v',96+12*ks+4*b,4),R('v',96+12*ks+8,4),'0' if t==0 and ks==0 else None)
    e('v_lshlrev_b32 v1, 4, v0'); e('s_lshl_b32 s5, s3, 12'); e('s_add_u32 s5, s5, 131072'); e('v_add_u32 v2, s5, v1')
    e('s_lshl_b32 s5, s39, 12'); e('s_add_u32 s5, s5, 131072'); e('v_add_u32 v3, s5, v1')
    e(f's_mov_b32 s5, {fhex(128**-0.5*1.4426950408889634)}')
    for q in range(64): e(f'v_accvgpr_write_b32 a{q}, 0')
    for q in range(32): e(f'v_mul_f32 v{64+q}, s5, v{64+q}')
    for q in range(16): e(f'v_cvt_pk_bf16_f32 v{96+q}, v{64+2*q}, v{65+2*q}')
    e('s_barrier')
    for q in range(4): e(f'ds_write_b128 v2, {R("v",96+4*q,4)} offset:{q*1024}')
    e('s_waitcnt vmcnt(12) lgkmcnt(0)'); e('s_barrier')
    for q in range(8): e(f'ds_read_b128 {R("a",64+4*q,4)}, v3 offset:{(q&3)*1024+(q>>2)*16384}')
    for i in range(8): e(kread(i,0))
    e('v_mov_b32 v24, 0'); e('v_mov_b32 v25, 0')
    for i in range(16):
        e(f's_waitcnt lgkmcnt({min(5,15-i) if i>=2 else 7-i})'); e(qk(i,SB[0],'0'))
        if 2<=i<10: e(kread(i+6,0))
    e('s_waitcnt vmcnt(0)'); e('s_barrier')
    for j in range(LEAD): e(kread(j,1))
    cdma('K',0); e('s_nop 7'); e('s_nop 3')
    x=lab(); e('s_cmp_lg_u32 s40, 1'); e(f's_cbranch_scc1 {x}'); maskw(SB[0]); e(f'{x}:')
    for y in maxw(SB[0])+SWAPMAX: e(y)
    e('v_mov_b32 v26, v27')
    for q in range(32): e(f'v_sub_f32 v{SB[0]+q}, v{SB[0]+q}, v27')
    for q in range(16): e(f'v_sub_f32 v{CN+q}, 0, v27')
    e('at_loop:')
    for p in range(2):
        e('s_cmp_eq_u32 s40, 1'); e(f's_cbranch_scc1 at_tail{p}')
        iteration(p,False); e('s_sub_u32 s40, s40, 1')
    e('s_branch at_loop')
    rescale(0); rescale(1)
    e('at_tail1:'); iteration(1,True); e('s_branch at_merge')
    e('at_tail0:'); iteration(0,True)
    e('at_merge:')
    e('v_add_f32 v24, v24, v25'); e('v_mov_b32 v25, v24'); e('s_nop 1'); e('v_permlane32_swap_b32 v25, v24'); e('s_nop 1'); e('v_add_f32 v24, v24, v25'); e('v_mov_b32 v25, v26')
    e('v_lshlrev_b32 v1, 3, v0'); e('s_lshl_b32 s5, s3, 9'); e('s_add_u32 s5, s5, 131072'); e('v_add_u32 v2, s5, v1'); e('s_xor_b32 s5, s5, 2048'); e('v_add_u32 v3, s5, v1')
    e('ds_write_b64 v2, v[24:25]'); e('s_waitcnt vmcnt(0) lgkmcnt(0)'); e('s_barrier'); e('ds_read_b64 v[32:33], v3')
    e('v_lshlrev_b32 v1, 4, v0'); e('s_lshl_b32 s5, s3, 13'); e('v_add_u32 v2, s5, v1'); e('s_xor_b32 s5, s5, 32768'); e('v_add_u32 v3, s5, v1')
    e('s_lshl_b32 s5, s37, 20'); e('s_lshl_b32 s6, s36, 8'); e('s_add_u32 s5, s5, s6'); e('s_lshl_b32 s6, s38, 7'); e('s_add_u32 s5, s5, s6')
    e('s_waitcnt lgkmcnt(0)')
    e('v_max_f32 v27, v25, v33'); e('v_sub_f32 v25, v25, v27'); e('v_sub_f32 v33, v33, v27'); e('v_exp_f32 v25, v25'); e('v_exp_f32 v33, v33'); e('s_nop 0')
    e('v_mul_f32 v24, v24, v25'); e('v_fmac_f32 v24, v32, v33'); e('v_rcp_f32 v24, v24'); e('s_nop 0'); e('v_mul_f32 v24, v24, v25')
    e('s_cmp_eq_u32 s38, 1'); e('s_cbranch_scc1 at_m1')
    for hh in range(2):
        if hh: e('at_m1:')
        for q in range(32): e(f'v_accvgpr_read_b32 v{64+q}, a{32*(1-hh)+q}')
        for q in range(32): e(f'v_mul_f32 v{64+q}, v{64+q}, v24')
        for q in range(8): e(f'ds_write_b128 v2, {R("v",64+4*q,4)} offset:{q*1024}')
        for q in range(32): e(f'v_accvgpr_read_b32 v{96+q}, a{32*hh+q}')
        if not hh: e('s_branch at_m2')
    e('at_m2:')
    e('s_waitcnt lgkmcnt(0)'); e('s_barrier')
    for q in range(8): e(f'ds_read_b128 {R("v",64+4*q,4)}, v3 offset:{q*1024}')
    for g in range(4):
        e(f's_waitcnt lgkmcnt({6-2*g})')
        for q in range(8): e(f'v_fmac_f32 v{64+8*g+q}, v{96+8*g+q}, v24')
        for q in range(4): e(f'v_cvt_pk_bf16_f32 v{128+4*g+q}, v{64+8*g+2*q}, v{65+8*g+2*q}')
        e(f'buffer_store_dwordx4 {R("v",128+4*g,4)}, v30, s[24:27], s5 offen offset:{g*32}')
    e('s_sub_u32 s41, s41, 1'); e('s_cmp_eq_u32 s41, 0'); e('s_cbranch_scc1 at_end')
    e('s_mov_b32 s37, s51'); e('s_barrier'); e('s_branch at_blk')
    e('at_end:')
    end(n,256,160)
```

```python
import sys,g0,g1,g2
NAME='sequential_preLN__compressed_kv_cla__mixer_token_mlp__prompt'
ref=open(f'cdna_kernels/{NAME}.s.ref').read().split('\n')
hdr=[x for x in ref if x.startswith(';') and '@launch' not in x and 'Override' not in x and 'grid=ceil' not in x][:15]
ks=[('kv_kernel',256,256,131072),('at_kernel',256,256,163840),('op_kernel',192,256,163840),('ln_kernel',256,128,0),('w1_kernel',216,256,147456),('w2_kernel',192,256,163840)]
for k,g,b,l in ks: hdr.append(f'; @launch kernel={k} grid=({g},1,1) block=({b},1,1) lds={l}')
hdr.append('.amdgcn_target "amdgcn-amd-amdhsa--gfx950"')
g1.k_kv(); g2.k_attn(); g1.k_oproj(); g1.k_ln(); g1.k_w1(); g1.k_w2()
out=sys.argv[1] if len(sys.argv)>1 else f'cdna_kernels/{NAME}.s'
open(out,'w').write('\n'.join(hdr+g0.L)+'\n')
```

```python
L=[]
def e(s): L.append(s)
WOP=0x4400000
XN,KB,VT,CTX,HB,HN,UB=0,0x400000,0x1400000,0x2400000,0x3400000,0x3800000,0x3C00000
SZ_X=2048*576*2
_lab=[0]
def lab(p='L'):
    _lab[0]+=1; return f'{p}_{_lab[0]}'
def srd(d,slot,off,size):
    e(f's_load_dwordx2 s[{d}:{d+1}], s[0:1], {slot*8}')
    return (d,off,size)
def srd_fin(lst):
    e('s_waitcnt lgkmcnt(0)')
    for d,off,size in lst:
        if off: e(f's_add_u32 s{d}, s{d}, {hex(off)}'); e(f's_addc_u32 s{d+1}, s{d+1}, 0')
        e(f's_mov_b32 s{d+2}, {hex(size)}'); e(f's_mov_b32 s{d+3}, 0x00020000')
import os
TS=os.environ.get('TS'); _k=[-1]
def stamp(i):
    if TS: e(f's_memrealtime s[{64+2*i}:{65+2*i}]')
def fin():
    if TS:
        e('s_memtime s[94:95]'); stamp(7); e('s_load_dwordx2 s[88:89], s[0:1], 104'); e('s_waitcnt lgkmcnt(0)'); e(f's_add_u32 s88, s88, {0x4200000+_k[0]*65536}'); e('s_addc_u32 s89, s89, 0'); e('s_mov_b32 s90, 65536'); e('s_mov_b32 s91, 0x20000')
        e('s_lshl_b32 s92, s2, 3'); e('s_add_u32 s92, s92, s3'); e('s_lshl_b32 s92, s92, 5'); e('v_mov_b32 v1, 0')
        e('s_sub_u32 s64, s64, s78'); e('s_sub_u32 s94, s94, s80'); e('s_lshl_b32 s94, s94, 13'); e('s_and_b32 s64, s64, 0x1fff'); e('s_or_b32 s64, s64, s94')
        for i in range(8): e(f'v_mov_b32 v{2+i}, s{64+2*i}')
        e('buffer_store_dwordx4 v[2:5], v1, s[88:91], s92 offen'); e('buffer_store_dwordx4 v[6:9], v1, s[88:91], s92 offen offset:16')
    e('s_endpgm')
def begin(name,nwg):
    _k[0]+=1
    e(f'.text\n.globl {name}\n.p2align 8\n.type {name},@function\n{name}:')
    e(f's_cmp_ge_u32 s2, {nwg}'); e(f's_cbranch_scc0 {name}_go'); e('s_endpgm'); e(f'{name}_go:')
    [stamp(i) for i in range(7)]; TS and e('s_memtime s[80:81]'); e('v_lshrrev_b32 v1, 6, v0'); e('v_and_b32 v0, 63, v0'); e('s_nop 0'); e('v_readfirstlane_b32 s3, v1')
def end(name,nv,acc):
    fin()
    e(f'.section .rodata,"a"\n.p2align 6\n.amdhsa_kernel {name}\n  .amdhsa_next_free_vgpr {nv}\n  .amdhsa_next_free_sgpr 96\n  .amdhsa_accum_offset {acc}\n  .amdhsa_group_segment_fixed_size 0\n  .amdhsa_kernarg_size 112\n  .amdhsa_user_sgpr_count 2\n  .amdhsa_user_sgpr_kernarg_segment_ptr 1\n  .amdhsa_system_sgpr_workgroup_id_x 1\n.end_amdhsa_kernel')
def mfma(d,a,b,c=None):
    e(f'v_mfma_f32_32x32x16_bf16 {d}, {a}, {b}, {c if c is not None else d}')
def R(p,i,n): return f'{p}[{i}:{i+n-1}]'
def interleave(main,fill,per=None):
    n=len(main); m=len(fill); j=0
    for i,x in enumerate(main):
        e(x)
        t=((i+1)*m+n-1)//n if per is None else min(m,(i+1)*per)
        while j<t:
            for y in fill[j]: e(y)
            j+=1
    while j<m:
        for y in fill[j]: e(y)
        j+=1

class Op:
    def __init__(s,kind,N,KST,stride,srd,soff,nb,perm=False):
        s.kind,s.N,s.KST,s.stride,s.srd,s.soff,s.nb,s.perm=kind,N,KST,stride,srd,soff,nb,perm
        s.nks=KST//16; s.sks=None
        s.bytes=N*KST*2; s.nd=s.bytes//1024
        s.kadv = KST*2 if kind=='kc' else KST*stride
    def dma_setup(s,vb,pieces,spiece,t0,t1,t2):
        s.vd=vb; s.pieces=pieces
        for n,i in enumerate(pieces):
            e(f'v_add_u32 v{t0}, {i*64}, v0')
            if spiece: e(f'v_lshl_add_u32 v{t0}, {spiece}, 6, v{t0}')
            cpr=(s.KST if s.kind=='kc' else s.N)//8
            if cpr==12:
                e(f'v_mul_u32_u24 v{t1}, 0x5556, v{t0}'); e(f'v_lshrrev_b32 v{t1}, 18, v{t1}')
                e(f'v_mul_u32_u24 v{t2}, 12, v{t1}'); e(f'v_sub_u32 v{t0}, v{t0}, v{t2}')
            else:
                lg=cpr.bit_length()-1
                e(f'v_lshrrev_b32 v{t1}, {lg}, v{t0}'); e(f'v_and_b32 v{t0}, {cpr-1}, v{t0}')
                if s.kind=='kc':
                    sh={4:2,8:1,16:0}[cpr]; e(f'v_bfe_u32 v{t2}, v{t1}, {sh}, {lg}')
                elif cpr==8: e(f'v_bfe_u32 v{t2}, v{t1}, 1, 1'); e(f'v_lshlrev_b32 v{t2}, 2, v{t2}')
                else: e(f'v_and_b32 v{t2}, 3, v{t1}'); e(f'v_lshlrev_b32 v{t2}, 2, v{t2}')
                e(f'v_xor_b32 v{t0}, v{t0}, v{t2}')
            e(f'v_mul_u32_u24 v{t1}, {s.stride}, v{t1}'); e(f'v_lshl_add_u32 v{vb+n}, v{t0}, 4, v{t1}')
            if n&3: e(f'v_subrev_u32 v{vb+n}, {(n&3)*1024}, v{vb+n}')
        return vb+len(pieces)
    def rd_setup(s,vb,sbase,t0,t1,t2):
        s.va=vb; v=s._rd(vb,sbase,t0,t1,t2); s.nra=v-vb
        pg=getattr(s,'pages',[0]); s.pg=pg
        for k in range(len(pg)-1,-1,-1):
            for r in range(s.nra):
                if pg[k]: e(f'v_add_u32 v{vb+k*s.nra+r}, {pg[k]*65536}, v{vb+r}')
        return vb+len(pg)*s.nra
    def _rd(s,vb,sbase,t0,t1,t2):
        if s.kind=='kc':
            cpr=s.KST//8; lg=cpr.bit_length()-1; sh={4:2,8:1,16:0}[cpr]
            e(f'v_and_b32 v{t0}, 31, v0'); e(f'v_bfe_u32 v{t1}, v0, {sh}, {lg}'); e(f'v_lshrrev_b32 v{t2}, 5, v0')
            e(f'v_xor_b32 v{t1}, v{t1}, v{t2}'); e(f'v_lshlrev_b32 v{t1}, 4, v{t1}')
            e(f'v_mul_u32_u24 v{t0}, {s.KST*2}, v{t0}'); e(f'v_add_u32 v{t0}, v{t0}, v{t1}')
            n=s.nks
            if s.sks: e(f'v_xor_b32 v{t0}, {s.sks}, v{t0}')
            for ks in range(n):
                e(f'v_xor_b32 v{vb+ks}, {ks*32}, v{t0}'); e(f'v_add_u32 v{vb+ks}, {sbase}, v{vb+ks}')
            return vb+n
        rb=s.N*2
        e(f'v_bfe_u32 v{t0}, v0, 2, 2'); e(f'v_lshrrev_b32 v{t1}, 5, v0')
        e(f'v_lshl_add_u32 v{t1}, v{t1}, {2 if s.perm else 3}, v{t0}'); e(f'v_mul_u32_u24 v{t1}, {rb}, v{t1}')
        e(f'v_bfe_u32 v{t2}, v0, 4, 1'); e(f'v_lshl_add_u32 v{t1}, v{t2}, 5, v{t1}')
        e(f'v_and_b32 v{t2}, 3, v0'); e(f'v_lshl_add_u32 v{t1}, v{t2}, 3, v{t1}'); e(f'v_add_u32 v{t1}, {sbase}, v{t1}')
        if s.N==96: e(f'v_mov_b32 v{vb}, v{t1}'); s.nx=1; return vb+1
        if s.N==64: e(f'v_lshrrev_b32 v{t0}, 1, v{t0}'); s.nx=2
        else: s.nx=min(4,s.nb)
        for b in range(s.nx):
            bb=b+getattr(s,'bx',0)
            if isinstance(getattr(s,'sbx',None),str):
                e(f'v_xor_b32 v{t2}, {s.sbx}, v{t0}'); e(f'v_xor_b32 v{t2}, {b}, v{t2}')
            else: e(f'v_xor_b32 v{t2}, {bb}, v{t0}')
            e(f'v_lshl_add_u32 v{vb+b}, v{t2}, 6, v{t1}')
        return vb+s.nx
    def reads(s,off,ks,fr,p='v'):
        g=[]; va=lambda o: s.va+s.pg.index(o>>16)*s.nra
        for b in range(s.nb):
            if s.kind=='kc':
                o=off+b*32*s.KST*2; g.append([f'ds_read_b128 {R(p,fr+4*b,4)}, v{va(o)+ks} offset:{o&65535}'])
            else:
                rb=s.N*2
                for t in range(2):
                    o=off+(ks*16+t*(8 if s.perm else 4))*rb+(b*64 if s.N==96 else 0)
                    g.append([f'ds_read_b64_tr_b16 {R(p,fr+4*b+2*t,2)}, v{va(o)+(b%s.nx)} offset:{o&65535}'])
        return g
    def dmas(s,sm0,off):
        return [([] if n&3 else [f's_add_u32 m0, {sm0}, {off+n*1024}', 's_nop 0'])+[f'buffer_load_dwordx4 v{s.vd+n}, s[{s.srd}:{s.srd+3}], s{s.soff} offen offset:{(n&3)*1024} lds'] for n in range(len(s.pieces))]

def gemm_loop(A,B,nst,nslot,slotb,offA,offB,smA,smB,fr,shared,kmul,mid=None):
    nks=A.nks; nd=len(A.pieces)+len(B.pieces); fs=4*(A.nb+B.nb)
    h1 = nd if nks==1 else nd//2
    def issue(slot,part):
        g=A.dmas(smA,slot*slotb+offA)+B.dmas(smB,slot*slotb+offB)
        adv=[[f's_add_u32 s{A.soff}, s{A.soff}, {A.kadv*kmul}',f's_add_u32 s{B.soff}, s{B.soff}, {B.kadv*kmul}']]
        if nks==1: return g+adv if part==0 else []
        return g[:h1] if part==0 else g[h1:]+adv
    def rd(slot,ks,st): return A.reads(slot*slotb+offA,ks,fr+st*fs)+B.reads(slot*slotb+offB,ks,fr+st*fs+4*A.nb)
    def mm(st):
        return [f'v_mfma_f32_32x32x16_bf16 {R("a",16*(i*B.nb+j),16)}, {R("v",fr+st*fs+4*i,4)}, {R("v",fr+st*fs+4*A.nb+4*j,4)}, {R("a",16*(i*B.nb+j),16)}' for i in range(A.nb) for j in range(B.nb)]
    for sl in range(nslot):
        for g in issue(sl,0)+(issue(sl,1) if sl<nslot-1 else []):
            for y in g: e(y)
    for i in range(16*A.nb*B.nb): e(f'v_accvgpr_write_b32 a{i}, 0')
    if mid: mid()
    e(f's_waitcnt vmcnt({nd*(nslot-2)+h1})')
    if shared: e('s_barrier')
    stamp(1)
    for g in rd(0,0,0):
        for y in g: e(y)
    def body(s0,s1):
        st=(s0*nks)&1
        for sg in range(s0,s1):
            sl=sg%nslot; refill=sg+nslot<nst
            for ks in range(nks):
                rds=[];dm=[]
                e('s_waitcnt lgkmcnt(0)')
                if ks==nks-1:
                    if sg<nst-1:
                        left = min(nst-1,sg+nslot-1)-sg-1
                        e(f's_waitcnt vmcnt({nd*left})')
                        if shared: e('s_barrier')
                        rds=rd((sl+1)%nslot,0,st^1)
                    if refill: dm=issue(sl,0)
                else:
                    rds=rd(sl,ks+1,st^1)
                    if ks==0 and sg-1+nslot<nst: dm=issue((sl-1)%nslot,1)
                m=mm(st); n1=max(1,(len(m)*5)//8) if dm else max(1,(len(m)*3)//4)
                interleave(m[:n1],rds); interleave(m[n1:],dm)
                st^=1
    per=nslot*(2 if (nslot*nks)&1 else 1); nl=(nst-nslot)//per
    lp=lab('gl')
    e(f's_mov_b32 s4, {nl}'); e(f'{lp}:')
    body(0,per)
    e('s_sub_u32 s4, s4, 1'); e('s_cmp_lg_u32 s4, 0'); e(f's_cbranch_scc1 {lp}')
    body(nl*per,nst)
    e('s_nop 7'); e('s_nop 7'); stamp(2)

def ln_rows(ssrc,sdst,srow,vb,twice,wait='vmcnt(0)',tmaj=False):
    a=vb; raw=vb+2; f=vb+20; t=vb+56
    e(f'v_lshrrev_b32 v{a}, 4, v0'); e(f'v_add_u32 v{a}, {srow}, v{a}'); e(f'v_mul_u32_u24 v{a}, 1152, v{a}')
    e(f'v_and_b32 v{t}, 15, v0'); e(f'v_lshl_add_u32 v{a}, v{t}, 3, v{a}')
    for i in range(9): e(f'buffer_load_dwordx2 {R("v",raw+2*i,2)}, v{a}, s[{ssrc}:{ssrc+3}], 0 offen offset:{128*i}')
    e(f's_waitcnt {wait}')
    def red(r):
        for sft in (8,4,2,1):
            e('s_nop 1'); e(f'v_add_f32_dpp v{r}, v{r}, v{r} row_ror:{sft} row_mask:0xf bank_mask:0xf')
    for it in range(2 if twice else 1):
        for i in range(18):
            e(f'v_lshlrev_b32 v{f+2*i}, 16, v{raw+i}'); e(f'v_and_b32 v{f+2*i+1}, 0xffff0000, v{raw+i}')
        e(f'v_add_f32 v{t}, v{f}, v{f+1}')
        for i in range(2,36): e(f'v_add_f32 v{t}, v{t}, v{f+i}')
        red(t); e(f'v_mul_f32 v{t}, {fhex(1/576)}, v{t}')
        for i in range(36): e(f'v_sub_f32 v{f+i}, v{f+i}, v{t}')
        e(f'v_mul_f32 v{t}, v{f}, v{f}')
        for i in range(1,36): e(f'v_fmac_f32 v{t}, v{f+i}, v{f+i}')
        red(t); e(f'v_mov_b32 v{t+1}, {fhex(1e-5)}'); e(f'v_fmac_f32 v{t+1}, {fhex(1/576)}, v{t}')
        e(f'v_rsq_f32 v{t}, v{t+1}'); e('s_nop 0')
        for i in range(36): e(f'v_mul_f32 v{f+i}, v{f+i}, v{t}')
        for i in range(18): e(f'v_cvt_pk_bf16_f32 v{raw+i}, v{f+2*i}, v{f+2*i+1}')
    if tmaj:
        e(f'v_lshrrev_b32 v{a}, 4, v0'); e(f'v_add_u32 v{a}, {srow}, v{a}'); e(f'v_mul_u32_u24 v{a}, 192, v{a}')
        e(f'v_and_b32 v{t}, 15, v0'); e(f'v_lshl_add_u32 v{a}, v{t}, 3, v{a}')
    for i in range(9):
        aa=a
        if tmaj: aa=f+i; e(f'v_add_u32 v{aa}, {16*i}, v{t}'); e(f'v_mul_u32_u24 v{aa}, 0xaab, v{aa}'); e(f'v_lshrrev_b32 v{aa}, 16, v{aa}'); e(f'v_mul_u32_u24 v{aa}, {393216-192}, v{aa}'); e(f'v_add_u32 v{aa}, v{aa}, v{a}')
        e(f'buffer_store_dwordx2 {R("v",raw+2*i,2)}, v{aa}, s[{sdst}:{sdst+3}], 0 offen offset:{128*i}')
import struct
def fhex(x): return hex(struct.unpack('<I',struct.pack('<f',x))[0])
TH=float(os.environ.get('TH',32))
SK=os.environ.get('SK','').replace('_',' '); SA=os.environ.get('SA','').replace('_',' ')
```

```python
from g0 import *
def k_kv():
    n='kv_kernel'; begin(n,256)
    l=[srd(8,1,0,2048*1024),srd(12,3,0,512*8192),srd(16,4,0,512*8192),srd(20,13,KB,1<<24),srd(24,13,VT,1<<24),srd(28,0,0,SZ_X),srd(32,13,XN,SZ_X),srd(48,5,0,4096*1152),srd(52,13,WOP,4096*1152)]
    e('s_and_b32 s5, s2, 7'); e('s_lshr_b32 s6, s2, 3'); e('s_and_b32 s36, s6, 7'); e('s_lshr_b32 s6, s6, 3')
    e('s_and_b32 s7, s6, 1'); e('s_lshl_b32 s5, s5, 1'); e('s_add_u32 s37, s5, s7'); e('s_lshr_b32 s38, s6, 1')
    e('s_lshr_b32 s39, s3, 1'); e('s_and_b32 s40, s3, 1')
    e('s_lshl_b32 s41, s3, 2'); e('s_lshl_b32 s42, s3, 12')
    e('s_lshl_b32 s43, s36, 18'); e('s_lshl_b32 s44, s37, 9')
    e('s_lshl_b32 s47, s2, 3'); e('s_lshl_b32 s5, s3, 2'); e('s_add_u32 s47, s47, s5')
    srd_fin(l)
    e('s_cmp_eq_u32 s38, 1'); e('s_cbranch_scc1 kv_v')
    for isV in (0,1):
        if isV: e('kv_v:')
        C=Op('kc',256,32,1024,8,43,4); W=Op('tr',256,32,8192,16 if isV else 12,44,4)
        A,B=(C,W) if isV else (W,C); C.pages=[0,1]; W.pages=[0,1]
        v=A.dma_setup(4,range(4),'s41',1,2,3); v=B.dma_setup(v,range(4),'s41',1,2,3)
        for o,sw in ((A,39),(B,40)):
            e(f's_lshl_b32 s45, s{sw}, {13 if o.kind=="kc" else 8}'); v=o.rd_setup(v,'s45',1,2,3)
        def mid():
            x=lab(); e('s_cmp_ge_u32 s3, 2'); e(f's_cbranch_scc1 {x}'); ln_rows(28,32,'s47',100,False); y=lab(); e(f's_branch {y}'); e(f'{x}:')
            e('s_lshl_b32 s5, s2, 1'); e('s_add_u32 s5, s5, s40'); e('s_mul_i32 s6, s5, 1536'); e('s_mul_i32 s5, s5, 9216'); e('v_lshlrev_b32 v100, 4, v0')
            for i in range(9): e(f'buffer_load_dwordx4 {R("v",112+4*i,4)}, v100, s[48:51], s5 offen offset:{(i&3)*1024}'); (i&3)==3 and e('s_add_u32 s5, s5, 4096')
            for i in range(9):
                e(f'v_add_u32 v100, {64*i}, v0'); e('v_mul_u32_u24 v101, 911, v100'); e('v_lshrrev_b32 v101, 16, v101'); e('v_mul_u32_u24 v102, 72, v101'); e('v_sub_u32 v100, v100, v102')
                e('v_mul_u32_u24 v102, 0x5556, v100'); e('v_lshrrev_b32 v102, 18, v102'); e(f'v_mul_u32_u24 v102, {786432-192}, v102'); e('v_mul_u32_u24 v101, 192, v101'); e('v_lshl_add_u32 v100, v100, 4, v101'); e(f'v_add_u32 v{103+i}, v100, v102')
            e('s_waitcnt vmcnt(0)')
            for i in range(9): e(f'buffer_store_dwordx4 {R("v",112+4*i,4)}, v{103+i}, s[52:55], s6 offen')
            e(f'{y}:')
        gemm_loop(A,B,16,4,32768,0,16384,'s42','s42',32,True,1,mid)
        RS=4096 if isV else 256; so=24 if isV else 20
        e(f'v_and_b32 v1, 31, v0'); e(f'v_mul_u32_u24 v1, {RS}, v1'); e('v_lshrrev_b32 v2, 5, v0'); e('v_lshl_add_u32 v1, v2, 4, v1')
        e(f's_lshl_b32 s5, s37, 1'); e(f's_add_u32 s5, s5, s{40 if isV else 39}'); e('s_lshl_b32 s5, s5, 19')
        e(f's_lshl_b32 s6, s36, 1'); e(f's_add_u32 s6, s6, s{39 if isV else 40}'); e(f's_lshl_b32 s6, s6, {8 if isV else 15}'); e('s_add_u32 s5, s5, s6')
        r=0
        for j in range(4):
            for i in range(4):
                for s in range(2):
                    t=8+12*(r%8); r+=1
                    for q in range(8): e(f'v_accvgpr_read_b32 v{t+q}, a{16*(i*4+j)+8*s+q}')
                    for q in range(4): e(f'v_cvt_pk_bf16_f32 v{t+8+q}, v{t+2*q}, v{t+2*q+1}')
                    e(f'buffer_store_dwordx4 {R("v",t+8,4)}, v1, s[{so}:{so+3}], s5 offen offset:{i*64+s*32}{SK}')
            e(f's_add_u32 s5, s5, {32*RS}')
        if not isV: fin()
    end(n,512,256)

def p_gemm(n,nwg,per,A,B,nst,nslot,srds,tile,epi,rounds):
    begin(n,nwg)
    l=[srd(*x) for x in srds]
    e('s_and_b32 s5, s2, 7'); e(f's_mul_i32 s5, s5, {per}'); e('s_lshr_b32 s6, s2, 3'); e('s_add_u32 s5, s5, s6')
    e('s_mul_i32 s36, s5, 0xaaab'); e('s_lshr_b32 s36, s36, 18'); e('s_mul_i32 s6, s36, 6'); e('s_sub_u32 s37, s5, s6')
    tile()
    slotb=A.bytes+B.bytes
    if A.KST==128:
        v=4
        for o,sp in ((A,45),(B,47)):
            e(f's_mul_i32 s{sp}, s3, {o.nd//4}'); e(f's_lshl_b32 s{sp+1}, s{sp}, 10'); o.nks=2; o.pages=[0,1,2]
            v=o.dma_setup(v,range(o.nd//4),f's{sp}',1,2,3)
        srd_fin(l)
        def mid():
            w=v
            for o in (A,B):
                if o.kind=='kc': e('s_lshl_b32 s42, s3, 6'); o.sks='s42'; w=o.rd_setup(w,'0',1,2,3)
                else: e(f's_mul_i32 s42, s3, {64*o.N}'); w=o.rd_setup(w,'s42',1,2,3)
            assert w<=32
        gemm_loop(A,B,nst,nslot,slotb,0,A.bytes,'s46','s48',32,True,1,mid)
    else:
        for o in (A,B): e(f's_mul_i32 s5, s3, {o.kadv}'); e(f's_add_u32 s{o.soff}, s{o.soff}, s5')
        e(f's_mul_i32 s42, s3, {slotb*nslot}')
        v=A.dma_setup(4,range(A.nd),None,1,2,3); v=B.dma_setup(v,range(B.nd),None,1,2,3)
        srd_fin(l)
        def mid(): w=A.rd_setup(v,'s42',1,2,3); w=B.rd_setup(w,'s42',1,2,3); assert w<=32
        gemm_loop(A,B,nst,nslot,slotb,0,A.bytes,'s42','s42',32,False,4,mid)
    nbr=A.nb//rounds; RW=32*nbr; cs=RW*4+16; wb=cs*32*B.nb; cpc=RW//8
    e(f'v_and_b32 v1, 31, v0'); e(f'v_mul_u32_u24 v1, {cs}, v1'); e('v_lshrrev_b32 v2, 5, v0'); e('v_lshl_add_u32 v1, v2, 4, v1')
    e(f's_mul_i32 s5, s3, {wb}'); e('v_add_u32 v1, s5, v1')
    e('v_lshl_add_u32 v2, s3, 6, v0')
    for k in range(3):
        e(f'v_add_u32 v3, {256*k}, v2')
        if cpc==12: e(f'v_mul_u32_u24 v{4+k}, 0x5556, v3'); e(f'v_lshrrev_b32 v{4+k}, 18, v{4+k}'); e(f'v_mul_u32_u24 v{8+k}, 12, v{4+k}'); e(f'v_sub_u32 v{8+k}, v3, v{8+k}')
        else: e(f'v_lshrrev_b32 v{4+k}, 3, v3'); e(f'v_and_b32 v{8+k}, 7, v3')
        e(f'v_mul_u32_u24 v{12+k}, {cs}, v{4+k}'); e(f'v_lshl_add_u32 v{12+k}, v{8+k}, 5, v{12+k}')
    e(f'v_add_u32 v15, {2*wb}, v12'); e(f'v_add_u32 v16, {2*wb}, v13'); e(f'v_add_u32 v17, {2*wb}, v14')
    for r in range(rounds):
        epi(r,'load')
        e('s_barrier')
        for i in range(nbr):
            for j in range(B.nb):
                for q in range(4): e(f'ds_write_b128 v1, {R("a",16*((r*nbr+i)*B.nb+j)+4*q,4)} offset:{j*32*cs+i*128+q*32}')
        e('s_waitcnt lgkmcnt(0)'); e('s_barrier')
        for k in range(3):
            for w in range(4):
                for hh in range(2): e(f'ds_read_b128 {R("v",64+32*k+8*w+4*hh,4)}, v{12+k+3*(w>>1)} offset:{(w&1)*wb+16*hh}')
        for k in range(3):
            e(f's_waitcnt lgkmcnt({min(15,8*(2-k))})')
            b=64+32*k
            for q in range(8): e(f'v_add_f32 v{b+q}, v{b+q}, v{b+8+q}'); e(f'v_add_f32 v{b+16+q}, v{b+16+q}, v{b+24+q}')
            for q in range(8): e(f'v_add_f32 v{b+q}, v{b+q}, v{b+16+q}')
            if k==0: e('s_waitcnt vmcnt(0)')
            epi(r,k)
    end(n,256+16*A.nb*B.nb,256)

def unpk(d,s):
    for q in range(4): e(f'v_lshlrev_b32 v{d+2*q}, 16, v{s+q}'); e(f'v_and_b32 v{d+2*q+1}, 0xffff0000, v{s+q}')
def res_epi(sres,sout,sbias):
    def epi(r,k):
        if k=='load':
            e('s_mul_i32 s5, s36, 73728'); e('s_mul_i32 s6, s37, 192'); e('s_add_u32 s5, s5, s6'); e('s_lshl_b32 s6, s36, 7')
            for k in range(3):
                e(f'v_mul_u32_u24 v{20+k}, 1152, v{4+k}'); e(f'v_lshl_add_u32 v{20+k}, v{8+k}, 4, v{20+k}')
                e(f'buffer_load_dwordx4 {R("v",32+4*k,4)}, v{20+k}, s[{sres}:{sres+3}], s5 offen')
                if sbias: e(f'v_lshlrev_b32 v3, 1, v{4+k}'); e(f'buffer_load_ushort v{24+k}, v3, s[{sbias}:{sbias+3}], s6 offen')
            return
        b=64+32*k
        if sbias:
            for q in range(4): e(f'v_cvt_pk_bf16_f32 v{b+8+q}, v{b+2*q}, v{b+2*q+1}')
            unpk(b,b+8); e(f'v_lshlrev_b32 v{24+k}, 16, v{24+k}')
            for q in range(8): e(f'v_add_f32 v{b+q}, v{b+q}, v{24+k}')
        for q in range(4): e(f'v_cvt_pk_bf16_f32 v{b+8+q}, v{b+2*q}, v{b+2*q+1}')
        unpk(b,b+8); unpk(b+16,32+4*k)
        for q in range(8): e(f'v_add_f32 v{b+q}, v{b+q}, v{b+16+q}')
        for q in range(4): e(f'v_cvt_pk_bf16_f32 v{b+8+q}, v{b+2*q}, v{b+2*q+1}')
        e(f'buffer_store_dwordx4 {R("v",b+8,4)}, v{20+k}, s[{sout}:{sout+3}], s5 offen{SA}')
    return epi
def k_oproj():
    A=Op('tr',96,128,192,8,43,3,perm=True); B=Op('kc',64,128,8192,12,44,2)
    def tile(): e('s_mul_i32 s43, s37, 786432'); e('s_lshl_b32 s44, s36, 19')
    p_gemm('op_kernel',192,24,A,B,32,4,[(8,13,WOP,4096*1152),(12,13,CTX,1<<24),(16,0,0,SZ_X),(20,13,HB,SZ_X)],tile,res_epi(16,20,None),1)
def k_w2():
    A=Op('kc',96,128,9216,8,43,3); B=Op('tr',64,128,4096,12,44,2)
    def tile(): e('s_mul_i32 s43, s37, 884736'); e('s_lshl_b32 s44, s36, 7')
    p_gemm('w2_kernel',192,24,A,B,36,4,[(8,13,UB,576*9216),(12,9,0,4608*4096),(16,13,HB,SZ_X),(20,11,0,SZ_X),(24,10,0,4096)],tile,res_epi(16,20,24),1)
def k_w1():
    A=Op('tr',128,16,9216,8,43,4); B=Op('tr',96,16,192,12,44,3)
    def tile(): e('s_lshl_b32 s43, s36, 8'); e('s_mul_i32 s44, s37, 393216')
    c1=-2*0.7978845608028654*1.4426950408889634
    def epi(r,k):
        if k=='load':
            e(f's_lshl_b32 s6, s36, 8'); e(f's_add_u32 s6, s6, {128*r}'); e('s_mul_i32 s5, s37, 884736'); e('s_add_u32 s5, s5, s6')
            e(f's_mov_b32 s7, {fhex(c1)}'); e('v_lshlrev_b32 v3, 4, v8'); e(f'buffer_load_dwordx4 v[32:35], v3, s[16:19], s6 offen')
            for k in range(3): e(f'v_mul_u32_u24 v{20+k}, 9216, v{4+k}'); e(f'v_lshl_add_u32 v{20+k}, v{8+k}, 4, v{20+k}')
            return
        b=64+32*k
        if k==0: unpk(40,32)
        for q in range(4): e(f'v_cvt_pk_bf16_f32 v{b+8+q}, v{b+2*q}, v{b+2*q+1}')
        unpk(b,b+8)
        for q in range(8): e(f'v_add_f32 v{b+q}, v{b+q}, v{40+q}')
        for q in range(8): e(f'v_mul_f32 v{b+8+q}, v{b+q}, v{b+q}')
        for q in range(8): e(f'v_mul_f32 v{b+8+q}, {fhex(c1*0.044715)}, v{b+8+q}')
        for q in range(8): e(f'v_add_f32 v{b+8+q}, s7, v{b+8+q}')
        for q in range(8): e(f'v_mul_f32 v{b+8+q}, v{b+8+q}, v{b+q}')
        for q in range(8): e(f'v_exp_f32 v{b+8+q}, v{b+8+q}')
        for q in range(8): e(f'v_add_f32 v{b+8+q}, 1.0, v{b+8+q}')
        for q in range(8): e(f'v_rcp_f32 v{b+8+q}, v{b+8+q}')
        for q in range(8): e(f'v_mul_f32 v{b+q}, v{b+q}, v{b+8+q}')
        for q in range(4): e(f'v_cvt_pk_bf16_f32 v{b+8+q}, v{b+2*q}, v{b+2*q+1}')
        e(f'buffer_store_dwordx4 {R("v",b+8,4)}, v{20+k}, s[20:23], s5 offen{SA}')
    p_gemm('w1_kernel',216,27,A,B,32,5,[(8,7,0,2048*9216),(12,13,HN,SZ_X),(16,8,0,9216),(20,13,UB,576*9216)],tile,epi,2)
def k_ln():
    n='ln_kernel'; begin(n,256)
    l=[srd(8,13,HB,SZ_X),srd(12,13,HN,SZ_X)]
    e('s_lshl_b32 s47, s2, 3'); e('s_lshl_b32 s5, s3, 2'); e('s_add_u32 s47, s47, s5')
    srd_fin(l); ln_rows(8,12,'s47',4,True,tmaj=True); end(n,64,64)
```

```python
from g0 import *
SB=[96,160]; PP=64; CN=32; FP=224; LEAD=int(os.environ.get('LEAD',6)); XE=int(os.environ.get('XE',26)); BI=int(os.environ.get('BI',27)); PF=int(os.environ.get('PF',1))
MR=[26,3]; VE=int(os.environ.get('VE',2))
def kread(i,slot): kb,s=i>>3,i&7; return f'ds_read_b128 {R("v",FP+4*(i%8),4)}, v{4+s} offset:{slot*16384+kb*8192}'
def vread(i,slot): ks,db=(i-16)>>2,i&3; return f'ds_read_b128 {R("v",FP+4*(i%8),4)}, v{12+ks} offset:{32768+slot*16384+db*4096}'
def qk(i,x,S,z=False): kb,s=i>>3,i&7; d=R("v",S+32*x+16*kb,16); return f'v_mfma_f32_32x32x16_bf16 {d}, {R("v",FP+4*(i%8),4)}, {R("a",128+32*x+4*s,4)}, {d if s else "0" if z else R("v",CN+16*x,16)}'
def pv(i,x): ks,db=(i-16)>>2,i&3; d=R("a",64*x+16*db,16); return f'v_mfma_f32_32x32x16_bf16 {d}, {R("v",FP+4*(i%8),4)}, {R("v",PP+16*x+4*ks,4)}, {d}'
def expseq(S):
    o=[];tail=[]
    for ks in range(4):
        for q in range(0,8,2):
            for x in range(2):
                r=S+32*x+8*ks+q
                o+=[f'v_exp_f32 v{r}, v{r}',f'v_exp_f32 v{r+1}, v{r+1}']+tail
                tail=[f'v_add_f32 v{24+x}, v{24+x}, v{r}',f'v_cvt_pk_bf16_f32 v{PP+16*x+4*ks+q//2}, v{r}, v{r+1}',f'v_add_f32 v{24+x}, v{24+x}, v{r+1}']
    return o+['s_nop 0']+tail
def maxw(S,n):
    o=[f'v_max3_f32 v27, v{S}, v{S+1}, v{S+2}',f'v_max3_f32 v28, v{S+3}, v{S+4}, v{S+5}']
    for q in range(6,n-2,4): o+=[f'v_max3_f32 v27, v27, v{S+q}, v{S+q+1}',f'v_max3_f32 v28, v28, v{S+q+2}, v{S+q+3}']
    return o+[f'v_max3_f32 v27, v27, v{S+n-2}, v{S+n-1}','v_max_f32 v27, v27, v28']
SWAPMAX=['v_mov_b32 v28, v27','s_nop 1','v_permlane32_swap_b32 v28, v27','s_nop 1','v_max_f32 v27, v27, v28']
def maskw(S):
    e(f'v_mov_b32 v28, {fhex(-1e9)}'); e('v_add_u32 v27, 32, v29')
    for g in range(0,64,4):
        for q in range(4):
            r=(g+q)&31; e(f'v_cmp_gt_i32 s[{52+2*q}:{53+2*q}], {32*(r>>4)+8*((r&15)>>2)+(r&3)}, v{27 if g>>5 else 29}')
        for q in range(4): e(f'v_cndmask_b32 v{S+g+q}, v{S+g+q}, v28, s[{52+2*q}:{53+2*q}]')
def dma(kind,slot):
    vb,sr,so,off,adv,mid=(16,16,45,slot*16384,32768,4096) if kind=='K' else (20,20,46,32768+slot*16384,256,131072)
    o=[]
    for n in range(8):
        o+=[([] if n&3 else [f's_add_u32 m0, s49, {off+n*1024}',f's_add_u32 s{so}, s{so}, {mid}' if n==4 else 's_nop 0'])+[f'buffer_load_dwordx4 v{vb+(n&3)}, s[{sr}:{sr+3}], s{so} offen offset:{(n&3)*1024} lds']]
    o[7].append(f's_add_u32 s{so}, s{so}, {hex((adv-mid)&0xffffffff)}')
    return o
def em(gs):
    for g in gs:
        for y in g: e(y)
def cdma(kind,slot,a=0,b=8,pad=None):
    c=47 if kind=='K' else 48; x=lab()
    e(f's_cmp_lt_i32 s{c}, 1'); e(f's_cbranch_scc1 {x}'); em(dma(kind,slot)[a:b]); e(f'{x}:')
    if b==8: e(f's_sub_u32 s{c}, s{c}, 1')
def split(l,n): return [l[(i*len(l))//n:((i+1)*len(l))//n] for i in range(n)]
def kvorg(): e('s_lshl_b32 s5, s36, 19'); e('s_lshl_b32 s6, s38, 14'); e('s_add_u32 s45, s5, s6'); e('s_lshl_b32 s6, s38, 7'); e('s_add_u32 s46, s5, s6')
NO=os.environ.get('NO','')
def iteration(p,tail):
    n0=len(L); iteration_(p,tail)
    if tail: return
    k={'x':('v_exp','v_add_f32','v_cvt'),'r':('ds_read',),'b':('s_barrier',),'d':('buffer_load_dwordx4',),'e':('v_exp',),'w':('s_waitcnt lgkm','s_waitcnt vmcnt'),'m':('v_max',)}
    L[n0:]=[y for y in L[n0:] if not any(y.startswith(k[c]) for c in NO)]
def iteration_(p,tail):
    Sc,Sn=SB[p],SB[p^1]
    ex=expseq(Sc); fill={i:[] for i in range(64)}
    nxt=LEAD; start=0
    if tail:
        for i in range(16,16+LEAD): e(vread(i,p))
        e(f's_movk_i32 s58, {32768+(p^1)*16384-65536}'); e('s_cmp_eq_u32 s41, 1'); e(f's_cbranch_scc1 at_t{p}')
        kvorg(); em(dma('K',0)+dma('K',1))
        for q in range(16): e(f'ds_read_b128 {R("a",128+4*q,4)}, v31 offset:{(q&3)*1024+((q>>2)&1)*16384+(q>>3)*4096}')
        e('s_waitcnt lgkmcnt(0)'); e(f'at_t{p}:')
        for y in ex[:42]: e(y)
        start=16; nxt=16+LEAD
        for i,g in enumerate(split(ex[42:],22)): fill[32+i]=g
    else:
        for i,g in enumerate(split(ex,2*XE)): fill[i]=g
        for i,g in enumerate(split(maxw(Sn,64),18)): fill[44+i]=fill[44+i]+g
        fill[62]=[f'v_cmp_lt_f32 vcc, {fhex(TH)}, v27']
    for i in range(start,32):
        if i<=BI: e(f's_waitcnt lgkmcnt({max(0,nxt-i-1)})')
        for x in range(2):
            e(qk(i,x,Sn) if i<16 else pv(i,x))
            if x==0 and nxt<32: e(kread(nxt,p^1) if nxt<16 else vread(nxt,p)); nxt+=1
            if i==21 and x and not tail:
                y=lab(); e('s_cmp_lg_u32 s40, 2'); e(f's_cbranch_scc1 {y}'); maskw(Sn); e(f'{y}:')
            if i==BI and x:
                e('s_waitcnt lgkmcnt(0)' if tail else 's_waitcnt vmcnt(1) lgkmcnt(0)')
                if not tail:
                    e('s_barrier')
                    for j in range(BI-23): e(kread(j,p))
            if BI<i<24+LEAD and x and not tail: e(kread(i-24,p))
            if i>=28 and not tail:
                j=(i-28)*2+x
                if VE: cdma('K',p^1,j,j+1)
                else: cdma('KV'[j>>2],p if j>>2 else p^1,(j&3)*2,(j&3)*2+2)
            if VE and not tail and (2*i+x)%VE==0 and (2*i+x)//VE<8: em(dma('V',p^1)[(2*i+x)//VE:][:1])
            if i==BI-1 and x and not tail: e(f'buffer_load_dword a192, v2, s[{8+4*p}:{11+4*p}], s{60+p} offen'); e(f's_add_u32 s{60+p}, s{60+p}, 16384'); e(f's_min_u32 s{60+p}, s{60+p}, s62')
            for y in fill[2*i+x]: e(y)
    if not tail: e(f's_cbranch_vccnz at_rs{p}'); e(f'at_rb{p}:')
def rescale(p):
    Sn=SB[p^1]; e(f'at_rs{p}:')
    for x in range(2):
        for y in maxw(Sn+32*x,32)+SWAPMAX: e(y)
        e('v_max_f32 v27, 0, v27'); e(f'v_add_f32 v{MR[x]}, v{MR[x]}, v27'); e('v_sub_f32 v28, 0, v27'); e('v_exp_f32 v28, v28')
        for q in range(32): e(f'v_sub_f32 v{Sn+32*x+q}, v{Sn+32*x+q}, v27')
        for q in range(16): e(f'v_sub_f32 v{CN+16*x+q}, 0, v{MR[x]}')
        e(f'v_mul_f32 v{24+x}, v{24+x}, v28')
        for g in range(64*x,64*x+64,4):
            for q in range(4): e(f'v_accvgpr_read_b32 v{PP+q}, a{g+q}')
            for q in range(4): e(f'v_mul_f32 v{PP+q}, v{PP+q}, v28')
            for q in range(4): e(f'v_accvgpr_write_b32 a{g+q}, v{PP+q}')
    e('s_nop 1'); e(f's_branch at_rb{p}')
def k_attn():
    n='at_kernel'; begin(n,256)
    l=[srd(8,13,XN,SZ_X),srd(12,2,0,576*8192),srd(16,13,KB,1<<24),srd(20,13,VT,1<<24),srd(24,13,CTX,1<<24)]
    e('s_and_b32 s5, s2, 7'); e('s_lshr_b32 s6, s2, 6'); e('s_lshl_b32 s5, s5, 2'); e('s_add_u32 s36, s5, s6')
    e('s_bfe_u32 s51, s2, 0x30003'); e('s_sub_u32 s37, 15, s51'); e('s_mov_b32 s41, 2')
    e('s_lshr_b32 s38, s3, 1'); e('s_and_b32 s39, s3, 1')
    e('s_lshl_b32 s5, s38, 16'); e('s_lshl_b32 s6, s39, 13'); e('s_add_u32 s49, s5, s6')
    e('s_lshl_b32 s50, s3, 12'); e('s_lshl_b32 s60, s3, 2'); e('s_lshl_b32 s61, s39, 3'); e('s_lshl_b32 s62, s38, 1')
    X=Op('kc',128,64,1152,8,43,2); W=Op('tr',128,64,8192,12,44,2); X.pages=[0,1]; W.pages=[1,2]; W.sbx='s62'
    e('s_mul_i32 s43, s51, 147456'); e('s_lshl_b32 s44, s36, 8'); e('s_sub_u32 s6, s37, s51'); e('s_mul_i32 s7, s6, 147456')
    v=X.dma_setup(36,range(4),'s60',1,2,3); v=W.dma_setup(v,range(4),'s60',1,2,3)
    for q in range(4): e(f'v_add_u32 v{32+q}, s7, v{36+q}')
    srd_fin(l)
    so=[(1,5,4),(2,6,9),(3,7,8)]
    def qissue(t):
        a,b,c=so[t%3]; X.vd=32; g=X.dmas('s50',a*16384); X.vd=36
        return g+X.dmas('s50',b*16384)+W.dmas('s50',c*16384)+[[f's_add_u32 s43, s43, {X.kadv}',f's_add_u32 s44, s44, {W.kadv}']]
    for t in range(3): em(qissue(t))
    Ko=Op('kc',64,128,256,16,45,2); Vo=Op('kc',128,64,4096,20,46,4)
    Ko.rd_setup(4,'s5',1,2,3); Vo.rd_setup(12,'s5',1,2,3)
    Ko.dma_setup(16,range(4),'s61',1,2,3); Vo.dma_setup(20,range(4),'s61',1,2,3)
    e('v_and_b32 v1, 31, v0'); e('v_lshrrev_b32 v2, 5, v0'); e('v_lshl_add_u32 v29, s39, 6, v1'); e('v_lshlrev_b32 v30, 13, v29'); e('v_lshl_add_u32 v30, v2, 4, v30')
    e('v_lshlrev_b32 v2, 2, v2'); e('v_sub_u32 v29, v29, v2'); e('s_lshl_b32 s5, s38, 6'); e('v_subrev_u32 v29, s5, v29')
    kvorg()
    e('s_lshl_b32 s5, s39, 13'); v=X.rd_setup(v,'s5',1,2,3); v=W.rd_setup(v,'0',1,2,3); assert v<=64
    def qrd(t,ks,st): a,b,c=so[t%3]; f=64+24*st; return W.reads(c*16384,ks,f)+X.reads(a*16384,ks,f+8)+X.reads(b*16384,ks,f+16)
    e('s_waitcnt vmcnt(24)'); e('s_barrier'); stamp(1); em(qrd(0,0,0))
    for t in range(9):
        for ks in range(4):
            st=ks&1; f=64+24*st; dm=[]
            e('s_waitcnt lgkmcnt(0)')
            if ks==3:
                if t<8: e(f's_waitcnt vmcnt({16 if t==7 else 12})')
                e('s_barrier'); rds=qrd(t+1,0,st^1) if t<8 else []
            else: rds=qrd(t,ks+1,st^1)
            tt=t if ks==3 else t-1
            d=[] if tt<0 else qissue(tt+3) if tt<6 else dma('K',0)+dma('K',1) if tt==6 else dma('V',0) if tt==7 else []
            if ks!=2: dm=split(d,3)[(ks+1)&3]
            m=[f'v_mfma_f32_32x32x16_bf16 {R("a",32*x+16*b,16)}, {R("v",f+4*b,4)}, {R("v",f+8+4*x,4)}, {"0" if t==0 and ks==0 else R("a",32*x+16*b,16)}' for x in range(4) for b in range(2)]
            interleave(m[:4],rds); interleave(m[4:],dm)
    l=[srd(8,7,0,2048*9216),srd(12,9,0,2048*9216)]
    e('v_lshlrev_b32 v1, 4, v0'); e('s_lshl_b32 s5, s3, 13'); e('s_add_u32 s5, s5, 131072'); e('v_add_u32 v2, s5, v1')
    e('s_lshl_b32 s5, s39, 13'); e('s_add_u32 s6, s5, 131072'); e('v_add_u32 v31, s6, v1'); e('s_add_u32 s6, s5, 49152'); e('v_add_u32 v3, s6, v1')
    e('v_add_u32 v32, 65536, v3'); e('s_add_u32 s6, s49, 49152'); e('v_add_u32 v1, s6, v1')
    e(f's_mov_b32 s5, {fhex(128**-0.5*1.4426950408889634)}'); e('s_nop 5')
    for x in range(4):
        for q in range(32): e(f'v_accvgpr_read_b32 v{64+q}, a{32*x+q}')
        for q in range(32): e(f'v_mul_f32 v{64+q}, s5, v{64+q}')
        for q in range(16): e(f'v_cvt_pk_bf16_f32 v{96+16*x+q}, v{64+2*q}, v{65+2*q}')
        for q in range(4): e(f'ds_write_b128 v{1+(x>>1)}, {R("v",96+16*x+4*q,4)} offset:{q*1024+(x&1)*4096}')
    srd_fin(l); e('s_mul_i32 s61, s2, 73728'); e('s_add_u32 s62, s61, 69632'); e('s_add_u32 s61, s61, s50'); e('s_mov_b32 s60, s61')
    e('s_waitcnt vmcnt(16)'); e('s_barrier')
    for q in range(16): e(f'ds_read_b128 {R("a",128+4*q,4)}, v{32 if (q>>2)&1 else 3} offset:{(q&3)*1024+(q>>3)*4096}')
    e('at_blk:')
    e('s_add_u32 s40, s37, 1'); e('s_sub_u32 s47, s37, 1'); e('s_mov_b32 s48, s37')
    for i in range(8): e(kread(i,0))
    e('v_mov_b32 v24, 0'); e('v_mov_b32 v25, 0'); e('v_lshlrev_b32 v2, 6, v0')
    for i in range(16):
        e(f's_waitcnt lgkmcnt({min(6,15-i) if i>=1 else 7})'); e(qk(i,0,SB[0],True))
        if 1<=i<9: e(kread(i+7,0))
        for q in range(4): e(f'v_accvgpr_write_b32 a{8*i+q}, 0')
        e(qk(i,1,SB[0],True))
        for q in range(4,8): e(f'v_accvgpr_write_b32 a{8*i+q}, 0')
    e('s_waitcnt vmcnt(0)'); e('s_barrier')
    for j in range(LEAD): e(kread(j,1))
    VE or cdma('V',1); cdma('K',0); e('s_nop 2')
    x=lab(); e('s_cmp_lg_u32 s40, 1'); e(f's_cbranch_scc1 {x}'); maskw(SB[0]); e(f'{x}:')
    for x in range(2):
        for y in maxw(SB[0]+32*x,32)+SWAPMAX: e(y)
        e(f'v_mov_b32 v{MR[x]}, v27')
        for q in range(32): e(f'v_sub_f32 v{SB[0]+32*x+q}, v{SB[0]+32*x+q}, v27')
        for q in range(16): e(f'v_sub_f32 v{CN+16*x+q}, 0, v27')
    if TS: e('s_cmp_eq_u32 s41, 2'); e('s_cbranch_scc1 at_f1'); stamp(5); e('s_branch at_loop'); e('at_f1:'); stamp(2)
    e('at_loop:')
    for p in range(2):
        e('s_cmp_eq_u32 s40, 1'); e(f's_cbranch_scc1 at_tail{p}')
        iteration(p,False); e('s_sub_u32 s40, s40, 1')
    e('s_branch at_loop')
    rescale(0); rescale(1)
    e('at_tail1:'); iteration(1,True); e('s_branch at_merge')
    e('at_tail0:'); iteration(0,True)
    e('at_merge:')
    if TS: e('s_cmp_eq_u32 s41, 2'); e('s_cbranch_scc1 at_f2'); stamp(6); e('s_branch at_f3'); e('at_f2:'); stamp(3); e('at_f3:')
    e('v_mov_b32 v27, v24'); e('v_mov_b32 v28, v25'); e('v_mov_b32 v34, v26'); e('v_mov_b32 v35, v3'); e('v_permlane32_swap_b32 v27, v24'); e('v_permlane32_swap_b32 v28, v25'); e('s_nop 1'); e('v_add_f32 v32, v24, v27'); e('v_add_f32 v33, v25, v28')
    e('v_lshlrev_b32 v1, 4, v0'); e('s_lshl_b32 s5, s3, 10'); e('s_add_u32 s5, s5, s58'); e('s_add_u32 s5, s5, 65536'); e('v_add_u32 v2, s5, v1'); e('s_xor_b32 s5, s5, 2048'); e('v_add_u32 v3, s5, v1')
    e('ds_write_b128 v2, v[32:35]'); e('s_waitcnt lgkmcnt(0)'); e('s_barrier'); e('ds_read_b128 v[36:39], v3')
    e('s_lshl_b32 s5, s39, 13'); e('s_add_u32 s5, s5, s49'); e('s_add_u32 s5, s5, 32768'); e('v_add_u32 v2, s5, v1'); e('s_xor_b32 s5, s5, 65536'); e('v_add_u32 v3, s5, v1')
    e('s_lshl_b32 s5, s37, 20'); e('s_lshl_b32 s6, s36, 8'); e('s_add_u32 s5, s5, s6'); e('s_lshl_b32 s6, s38, 7'); e('s_add_u32 s5, s5, s6'); e('s_add_u32 s6, s5, 262144')
    e('s_waitcnt lgkmcnt(0)'); e('s_barrier')
    for x in range(2):
        e(f'v_max_f32 v27, v{34+x}, v{38+x}'); e(f'v_sub_f32 v{34+x}, v{34+x}, v27'); e(f'v_sub_f32 v{38+x}, v{38+x}, v27'); e(f'v_exp_f32 v{34+x}, v{34+x}'); e(f'v_exp_f32 v{38+x}, v{38+x}'); e('s_nop 0')
        e(f'v_mul_f32 v{24+x}, v{32+x}, v{34+x}'); e(f'v_fmac_f32 v{24+x}, v{36+x}, v{38+x}'); e(f'v_rcp_f32 v{24+x}, v{24+x}'); e('s_nop 0'); e(f'v_mul_f32 v{24+x}, v{24+x}, v{34+x}')
    e('s_cmp_eq_u32 s38, 1'); e('s_cbranch_scc1 at_m1')
    for hh in range(2):
        if hh: e('at_m1:')
        for g in range(0,64,8):
            for q in range(g,g+8): e(f'v_accvgpr_read_b32 v{64+q}, a{64*(q>>5)+32*(1-hh)+(q&31)}')
            for q in range(g,g+8): e(f'v_mul_f32 v{64+q}, v{64+q}, v{24+(q>>5)}')
            for q in range(2): e(f'ds_write_b128 v2, {R("v",64+g+4*q,4)} offset:{(g//4+q)*1024}')
        for q in range(64): e(f'v_accvgpr_read_b32 v{128+q}, a{64*(q>>5)+32*hh+(q&31)}')
        if not hh: e('s_branch at_m2')
    e('at_m2:')
    e('s_waitcnt lgkmcnt(0)'); e('s_barrier')
    for q in range(16): e(f'ds_read_b128 {R("v",64+4*q,4)}, v3 offset:{q*1024}')
    for g in range(8):
        e(f's_waitcnt lgkmcnt({14-2*g})')
        for q in range(8): e(f'v_fmac_f32 v{64+8*g+q}, v{128+8*g+q}, v{24+(g>>2)}')
        for q in range(4): e(f'v_cvt_pk_bf16_f32 v{192+4*g+q}, v{64+8*g+2*q}, v{65+8*g+2*q}')
        e(f'buffer_store_dwordx4 {R("v",192+4*g,4)}, v30, s[24:27], s{5+(g>>2)} offen offset:{(g&3)*32}{SA}')
    e('s_sub_u32 s41, s41, 1'); e('s_cmp_eq_u32 s41, 0'); e('s_cbranch_scc1 at_end')
    e('s_mov_b32 s37, s51'); e('s_waitcnt vmcnt(8)'); e('s_barrier'); stamp(4)
    em(dma('V',0)); e('s_branch at_blk')
    e('at_end:')
    end(n,456,256)
```

```python
L=[]
def e(s): L.append(s)
WOP=0x4400000
XN,KB,VT,CTX,HB,HN,UB=0,0x400000,0x1400000,0x2400000,0x3400000,0x3800000,0x3C00000
SZ_X=2048*576*2
_lab=[0]
def lab(p='L'):
    _lab[0]+=1; return f'{p}_{_lab[0]}'
def srd(d,slot,off,size):
    e(f's_load_dwordx2 s[{d}:{d+1}], s[0:1], {slot*8}')
    return (d,off,size)
def srd_fin(lst):
    e('s_waitcnt lgkmcnt(0)')
    for d,off,size in lst:
        if off: e(f's_add_u32 s{d}, s{d}, {hex(off)}'); e(f's_addc_u32 s{d+1}, s{d+1}, 0')
        e(f's_mov_b32 s{d+2}, {hex(size)}'); e(f's_mov_b32 s{d+3}, 0x00020000')
import os
TS=os.environ.get('TS'); _k=[-1]
def stamp(i):
    if TS: e(f's_memrealtime s[{64+2*i}:{65+2*i}]')
def fin():
    if TS:
        e('s_memtime s[94:95]'); stamp(7); e('s_load_dwordx2 s[88:89], s[0:1], 104'); e('s_waitcnt lgkmcnt(0)'); e(f's_add_u32 s88, s88, {0x4200000+_k[0]*65536}'); e('s_addc_u32 s89, s89, 0'); e('s_mov_b32 s90, 65536'); e('s_mov_b32 s91, 0x20000')
        e('s_lshl_b32 s92, s2, 3'); e('s_add_u32 s92, s92, s3'); e('s_lshl_b32 s92, s92, 5'); e('v_mov_b32 v1, 0')
        e('s_sub_u32 s64, s64, s78'); e('s_sub_u32 s94, s94, s80'); e('s_lshl_b32 s94, s94, 13'); e('s_and_b32 s64, s64, 0x1fff'); e('s_or_b32 s64, s64, s94')
        for i in range(8): e(f'v_mov_b32 v{2+i}, s{64+2*i}')
        e('buffer_store_dwordx4 v[2:5], v1, s[88:91], s92 offen'); e('buffer_store_dwordx4 v[6:9], v1, s[88:91], s92 offen offset:16')
    e('s_endpgm')
def begin(name,nwg):
    _k[0]+=1
    e(f'.text\n.globl {name}\n.p2align 8\n.type {name},@function\n{name}:')
    e(f's_cmp_ge_u32 s2, {nwg}'); e(f's_cbranch_scc0 {name}_go'); e('s_endpgm'); e(f'{name}_go:')
    [stamp(i) for i in range(7)]; TS and e('s_memtime s[80:81]'); e('v_lshrrev_b32 v1, 6, v0'); e('v_and_b32 v0, 63, v0'); e('s_nop 0'); e('v_readfirstlane_b32 s3, v1')
def end(name,nv,acc):
    fin()
    e(f'.section .rodata,"a"\n.p2align 6\n.amdhsa_kernel {name}\n  .amdhsa_next_free_vgpr {nv}\n  .amdhsa_next_free_sgpr 96\n  .amdhsa_accum_offset {acc}\n  .amdhsa_group_segment_fixed_size 0\n  .amdhsa_kernarg_size 112\n  .amdhsa_user_sgpr_count 2\n  .amdhsa_user_sgpr_kernarg_segment_ptr 1\n  .amdhsa_system_sgpr_workgroup_id_x 1\n.end_amdhsa_kernel')
def mfma(d,a,b,c=None):
    e(f'v_mfma_f32_32x32x16_bf16 {d}, {a}, {b}, {c if c is not None else d}')
def R(p,i,n): return f'{p}[{i}:{i+n-1}]'
def interleave(main,fill,per=None):
    n=len(main); m=len(fill); j=0
    for i,x in enumerate(main):
        e(x)
        t=((i+1)*m+n-1)//n if per is None else min(m,(i+1)*per)
        while j<t:
            for y in fill[j]: e(y)
            j+=1
    while j<m:
        for y in fill[j]: e(y)
        j+=1

class Op:
    def __init__(s,kind,N,KST,stride,srd,soff,nb,perm=False):
        s.kind,s.N,s.KST,s.stride,s.srd,s.soff,s.nb,s.perm=kind,N,KST,stride,srd,soff,nb,perm
        s.nks=KST//16; s.sks=None
        s.bytes=N*KST*2; s.nd=s.bytes//1024
        s.kadv = KST*2 if kind=='kc' else KST*64 if kind=='fm' else KST*stride
    def dma_setup(s,vb,pieces,spiece,t0,t1,t2):
        s.vd=vb; s.pieces=pieces
        for n,i in enumerate(pieces):
            e(f'v_add_u32 v{t0}, {i*64}, v0')
            if spiece: e(f'v_lshl_add_u32 v{t0}, {spiece}, 6, v{t0}')
            cpr=(s.KST if s.kind=='kc' else s.N)//8
            if s.kind=='fm': e(f'v_lshrrev_b32 v{t1}, 9, v{t0}'); e(f'v_and_b32 v{t0}, 511, v{t0}')
            elif cpr==12:
                e(f'v_mul_u32_u24 v{t1}, 0x5556, v{t0}'); e(f'v_lshrrev_b32 v{t1}, 18, v{t1}')
                e(f'v_mul_u32_u24 v{t2}, 12, v{t1}'); e(f'v_sub_u32 v{t0}, v{t0}, v{t2}')
            else:
                lg=cpr.bit_length()-1
                e(f'v_lshrrev_b32 v{t1}, {lg}, v{t0}'); e(f'v_and_b32 v{t0}, {cpr-1}, v{t0}')
                if s.kind=='kc':
                    sh={4:2,8:1,16:0}[cpr]; e(f'v_bfe_u32 v{t2}, v{t1}, {sh}, {lg}')
                elif cpr==8: e(f'v_bfe_u32 v{t2}, v{t1}, 1, 1'); e(f'v_lshlrev_b32 v{t2}, 2, v{t2}')
                else: e(f'v_and_b32 v{t2}, 3, v{t1}'); e(f'v_lshlrev_b32 v{t2}, 2, v{t2}')
                e(f'v_xor_b32 v{t0}, v{t0}, v{t2}')
            e(f'v_mul_u32_u24 v{t1}, {s.stride}, v{t1}'); e(f'v_lshl_add_u32 v{vb+n}, v{t0}, 4, v{t1}')
            if n&3: e(f'v_subrev_u32 v{vb+n}, {(n&3)*1024}, v{vb+n}')
        return vb+len(pieces)
    def rd_setup(s,vb,sbase,t0,t1,t2):
        s.va=vb; v=s._rd(vb,sbase,t0,t1,t2); s.nra=v-vb
        pg=getattr(s,'pages',[0]); s.pg=pg
        for k in range(len(pg)-1,-1,-1):
            for r in range(s.nra):
                if pg[k]: e(f'v_add_u32 v{vb+k*s.nra+r}, {pg[k]*65536}, v{vb+r}')
        return vb+len(pg)*s.nra
    def _rd(s,vb,sbase,t0,t1,t2):
        if s.kind=='fm': e(f'v_lshlrev_b32 v{vb}, 4, v0'); e(f'v_add_u32 v{vb}, {sbase}, v{vb}'); return vb+1
        if s.kind=='kc':
            cpr=s.KST//8; lg=cpr.bit_length()-1; sh={4:2,8:1,16:0}[cpr]
            e(f'v_and_b32 v{t0}, 31, v0'); e(f'v_bfe_u32 v{t1}, v0, {sh}, {lg}'); e(f'v_lshrrev_b32 v{t2}, 5, v0')
            e(f'v_xor_b32 v{t1}, v{t1}, v{t2}'); e(f'v_lshlrev_b32 v{t1}, 4, v{t1}')
            e(f'v_mul_u32_u24 v{t0}, {s.KST*2}, v{t0}'); e(f'v_add_u32 v{t0}, v{t0}, v{t1}')
            n=s.nks
            if s.sks: e(f'v_xor_b32 v{t0}, {s.sks}, v{t0}')
            for ks in range(n):
                e(f'v_xor_b32 v{vb+ks}, {ks*32}, v{t0}'); e(f'v_add_u32 v{vb+ks}, {sbase}, v{vb+ks}')
            return vb+n
        rb=s.N*2
        e(f'v_bfe_u32 v{t0}, v0, 2, 2'); e(f'v_lshrrev_b32 v{t1}, 5, v0')
        e(f'v_lshl_add_u32 v{t1}, v{t1}, {2 if s.perm else 3}, v{t0}'); e(f'v_mul_u32_u24 v{t1}, {rb}, v{t1}')
        e(f'v_bfe_u32 v{t2}, v0, 4, 1'); e(f'v_lshl_add_u32 v{t1}, v{t2}, 5, v{t1}')
        e(f'v_and_b32 v{t2}, 3, v0'); e(f'v_lshl_add_u32 v{t1}, v{t2}, 3, v{t1}'); e(f'v_add_u32 v{t1}, {sbase}, v{t1}')
        if s.N==96: e(f'v_mov_b32 v{vb}, v{t1}'); s.nx=1; return vb+1
        if s.N==64: e(f'v_lshrrev_b32 v{t0}, 1, v{t0}'); s.nx=2
        else: s.nx=min(4,s.nb)
        for b in range(s.nx):
            bb=b+getattr(s,'bx',0)
            if isinstance(getattr(s,'sbx',None),str):
                e(f'v_xor_b32 v{t2}, {s.sbx}, v{t0}'); e(f'v_xor_b32 v{t2}, {b}, v{t2}')
            else: e(f'v_xor_b32 v{t2}, {bb}, v{t0}')
            e(f'v_lshl_add_u32 v{vb+b}, v{t2}, 6, v{t1}')
        return vb+s.nx
    def reads(s,off,ks,fr,p='v'):
        g=[]; va=lambda o: s.va+s.pg.index(o>>16)*s.nra
        for b in range(s.nb):
            if s.kind=='fm': o=off+b*8192+ks*1024; g.append([f'ds_read_b128 {R(p,fr+4*b,4)}, v{va(o)} offset:{o&65535}'])
            elif s.kind=='kc':
                o=off+b*32*s.KST*2; g.append([f'ds_read_b128 {R(p,fr+4*b,4)}, v{va(o)+ks} offset:{o&65535}'])
            else:
                rb=s.N*2
                for t in range(2):
                    o=off+(ks*16+t*(8 if s.perm else 4))*rb+(b*64 if s.N==96 else 0)
                    g.append([f'ds_read_b64_tr_b16 {R(p,fr+4*b+2*t,2)}, v{va(o)+(b%s.nx)} offset:{o&65535}'])
        return g
    def dmas(s,sm0,off):
        return [([] if n&3 else [f's_add_u32 m0, {sm0}, {off+n*1024}', 's_nop 0'])+[f'buffer_load_dwordx4 v{s.vd+n}, s[{s.srd}:{s.srd+3}], s{s.soff} offen offset:{(n&3)*1024} lds'] for n in range(len(s.pieces))]

def gemm_loop(A,B,nst,nslot,slotb,offA,offB,smA,smB,fr,shared,kmul,mid=None,xv=0):
    nks=A.nks; nd=len(A.pieces)+len(B.pieces); fs=4*(A.nb+B.nb)
    h1 = nd if nks==1 else nd//2
    def issue(slot,part):
        g=A.dmas(smA,slot*slotb+offA)+B.dmas(smB,slot*slotb+offB)
        adv=[[f's_add_u32 s{A.soff}, s{A.soff}, {A.kadv*kmul}',f's_add_u32 s{B.soff}, s{B.soff}, {B.kadv*kmul}']]
        if nks==1: return g+adv if part==0 else []
        return g[:h1] if part==0 else g[h1:]+adv
    def rd(slot,ks,st): return A.reads(slot*slotb+offA,ks,fr+st*fs)+B.reads(slot*slotb+offB,ks,fr+st*fs+4*A.nb)
    def mm(st):
        return [f'v_mfma_f32_32x32x16_bf16 {R("a",16*(i*B.nb+j),16)}, {R("v",fr+st*fs+4*i,4)}, {R("v",fr+st*fs+4*A.nb+4*j,4)}, {R("a",16*(i*B.nb+j),16)}' for i in range(A.nb) for j in range(B.nb)]
    for sl in range(nslot):
        for g in issue(sl,0)+(issue(sl,1) if sl<nslot-1 else []):
            for y in g: e(y)
    for i in range(16*A.nb*B.nb): e(f'v_accvgpr_write_b32 a{i}, 0')
    if mid: mid()
    e(f's_waitcnt vmcnt({nd*(nslot-2)+h1+xv})')
    if shared: e('s_barrier')
    stamp(1)
    for g in rd(0,0,0):
        for y in g: e(y)
    def body(s0,s1):
        st=(s0*nks)&1
        for sg in range(s0,s1):
            sl=sg%nslot; refill=sg+nslot<nst
            for ks in range(nks):
                rds=[];dm=[]
                e('s_waitcnt lgkmcnt(0)')
                if ks==nks-1:
                    if sg<nst-1:
                        left = min(nst-1,sg+nslot-1)-sg-1
                        e(f's_waitcnt vmcnt({nd*left})')
                        if shared: e('s_barrier')
                        rds=rd((sl+1)%nslot,0,st^1)
                    if refill: dm=issue(sl,0)
                else:
                    rds=rd(sl,ks+1,st^1)
                    if ks==0 and sg-1+nslot<nst: dm=issue((sl-1)%nslot,1)
                m=mm(st); n1=max(1,(len(m)*5)//8) if dm else max(1,(len(m)*3)//4)
                interleave(m[:n1],rds); interleave(m[n1:],dm)
                st^=1
    per=nslot*(2 if (nslot*nks)&1 else 1); nl=(nst-nslot)//per
    lp=lab('gl')
    e(f's_mov_b32 s4, {nl}'); e(f'{lp}:')
    body(0,per)
    e('s_sub_u32 s4, s4, 1'); e('s_cmp_lg_u32 s4, 0'); e(f's_cbranch_scc1 {lp}')
    body(nl*per,nst)
    e('s_nop 7'); e('s_nop 7'); stamp(2)

def ln_rows(ssrc,sdst,srow,vb,twice,wait='vmcnt(0)',tmaj=False,part=3):
    a=vb; raw=vb+2; f=vb+20; t=vb+56
    if part&1:
        e(f'v_lshrrev_b32 v{a}, 4, v0'); e(f'v_add_u32 v{a}, {srow}, v{a}'); e(f'v_mul_u32_u24 v{a}, 1152, v{a}')
        e(f'v_and_b32 v{t}, 15, v0'); e(f'v_lshl_add_u32 v{a}, v{t}, 3, v{a}')
        for i in range(9): e(f'buffer_load_dwordx2 {R("v",raw+2*i,2)}, v{a}, s[{ssrc}:{ssrc+3}], 0 offen offset:{128*i}')
    if part==1: return
    if part==3: e(f's_waitcnt {wait}')
    def red(r):
        for sft in (8,4,2,1):
            e('s_nop 1'); e(f'v_add_f32_dpp v{r}, v{r}, v{r} row_ror:{sft} row_mask:0xf bank_mask:0xf')
    for it in range(2 if twice else 1):
        for i in range(18):
            e(f'v_lshlrev_b32 v{f+2*i}, 16, v{raw+i}'); e(f'v_and_b32 v{f+2*i+1}, 0xffff0000, v{raw+i}')
        e(f'v_add_f32 v{t}, v{f}, v{f+1}')
        for i in range(2,36): e(f'v_add_f32 v{t}, v{t}, v{f+i}')
        red(t); e(f'v_mul_f32 v{t}, {fhex(1/576)}, v{t}')
        for i in range(36): e(f'v_sub_f32 v{f+i}, v{f+i}, v{t}')
        e(f'v_mul_f32 v{t}, v{f}, v{f}')
        for i in range(1,36): e(f'v_fmac_f32 v{t}, v{f+i}, v{f+i}')
        red(t); e(f'v_mov_b32 v{t+1}, {fhex(1e-5)}'); e(f'v_fmac_f32 v{t+1}, {fhex(1/576)}, v{t}')
        e(f'v_rsq_f32 v{t}, v{t+1}'); e('s_nop 0')
        for i in range(36): e(f'v_mul_f32 v{f+i}, v{f+i}, v{t}')
        for i in range(18): e(f'v_cvt_pk_bf16_f32 v{raw+i}, v{f+2*i}, v{f+2*i+1}')
    if tmaj:
        e(f'v_lshrrev_b32 v{a}, 4, v0'); e(f'v_add_u32 v{a}, {srow}, v{a}'); e(f'v_mul_u32_u24 v{a}, 192, v{a}')
        e(f'v_and_b32 v{t}, 15, v0'); e(f'v_lshl_add_u32 v{a}, v{t}, 3, v{a}')
    for i in range(9):
        aa=a
        if tmaj: aa=f+i; e(f'v_add_u32 v{aa}, {16*i}, v{t}'); e(f'v_mul_u32_u24 v{aa}, 0xaab, v{aa}'); e(f'v_lshrrev_b32 v{aa}, 16, v{aa}'); e(f'v_mul_u32_u24 v{aa}, {393216-192}, v{aa}'); e(f'v_add_u32 v{aa}, v{aa}, v{a}')
        e(f'buffer_store_dwordx2 {R("v",raw+2*i,2)}, v{aa}, s[{sdst}:{sdst+3}], 0 offen offset:{128*i}')
import struct
def fhex(x): return hex(struct.unpack('<I',struct.pack('<f',x))[0])
TH=float(os.environ.get('TH',32))
SK=os.environ.get('SK','_sc0_sc1').replace('_',' '); SA=os.environ.get('SA','_sc0_sc1').replace('_',' ')
```

```python
from g0 import *
def k_kv():
    n='kv_kernel'; begin(n,256)
    l=[srd(8,1,0,2048*1024),srd(12,3,0,512*8192),srd(16,4,0,512*8192),srd(20,13,KB,1<<24),srd(24,13,VT,1<<24),srd(28,0,0,SZ_X),srd(32,13,XN,SZ_X),srd(48,5,0,4096*1152),srd(52,13,WOP,4096*1152),srd(56,2,0,576*8192)]
    e('s_and_b32 s5, s2, 7'); e('s_lshr_b32 s6, s2, 3'); e('s_and_b32 s36, s6, 7'); e('s_lshr_b32 s6, s6, 3')
    e('s_and_b32 s7, s6, 1'); e('s_lshl_b32 s5, s5, 1'); e('s_add_u32 s37, s5, s7'); e('s_lshr_b32 s38, s6, 1')
    e('s_lshr_b32 s39, s3, 1'); e('s_and_b32 s40, s3, 1')
    e('s_lshl_b32 s41, s3, 2'); e('s_lshl_b32 s42, s3, 12')
    e('s_lshl_b32 s43, s36, 18'); e('s_lshl_b32 s44, s37, 9')
    e('s_lshl_b32 s47, s2, 3'); e('s_lshl_b32 s5, s3, 2'); e('s_add_u32 s47, s47, s5')
    srd_fin(l)
    e('s_cmp_eq_u32 s38, 1'); e('s_cbranch_scc1 kv_v')
    for isV in (0,1):
        if isV: e('kv_v:')
        C=Op('kc',256,32,1024,8,43,4); W=Op('tr',256,32,8192,16 if isV else 12,44,4)
        A,B=(C,W) if isV else (W,C); C.pages=[0,1]; W.pages=[0,1]
        v=A.dma_setup(4,range(4),'s41',1,2,3); v=B.dma_setup(v,range(4),'s41',1,2,3)
        for o,sw in ((A,39),(B,40)):
            e(f's_lshl_b32 s45, s{sw}, {13 if o.kind=="kc" else 8}'); v=o.rd_setup(v,'s45',1,2,3)
        def side(part):
            x=lab(); e('s_cmp_ge_u32 s3, 2'); e(f's_cbranch_scc1 {x}'); ln_rows(28,32,'s47',110,False,part=part); y=lab(); e(f's_branch {y}'); e(f'{x}:')
            e('s_lshl_b32 s5, s2, 1'); e('s_add_u32 s5, s5, s40'); e('s_mul_i32 s6, s5, 1536'); e('s_mul_i32 s5, s5, 9216'); e('v_lshlrev_b32 v110, 4, v0')
            for i in range(9):
                if part==1: e(f'buffer_load_dwordx4 {R("v",124+4*i,4)}, v110, s[48:51], s5 offen offset:{(i&3)*1024}'); (i&3)==3 and e('s_add_u32 s5, s5, 4096'); continue
                e(f'v_add_u32 v110, {64*i}, v0'); e('v_mul_u32_u24 v111, 911, v110'); e('v_lshrrev_b32 v111, 16, v111'); e('v_mul_u32_u24 v112, 72, v111'); e('v_sub_u32 v110, v110, v112')
                e('v_mul_u32_u24 v112, 0x5556, v110'); e('v_lshrrev_b32 v112, 18, v112'); e(f'v_mul_u32_u24 v112, {786432-192}, v112'); e('v_mul_u32_u24 v111, 192, v111'); e('v_lshl_add_u32 v110, v110, 4, v111'); e(f'v_add_u32 v{113+i}, v110, v112')
                e(f'buffer_store_dwordx4 {R("v",124+4*i,4)}, v{113+i}, s[52:55], s6 offen')
            e(f'{y}:')
        def mid(): e('s_waitcnt vmcnt(28)'); side(2)
        if 1:
            side(1); e('s_lshl_b32 s5, s2, 2'); e('s_add_u32 s5, s5, s3'); e('s_mul_i32 s5, s5, 4608'); e('v_mul_u32_u24 v108, 72, v0'); e('buffer_load_dword v109, v108, s[56:59], s5 offen')
        gemm_loop(A,B,16,4,32768,0,16384,'s42','s42',32,True,1,mid,9)
        so=24 if isV else 20
        e('v_lshlrev_b32 v1, 4, v0')
        e(f's_lshl_b32 s5, s37, 1'); e(f's_add_u32 s5, s5, s{40 if isV else 39}'); e('s_lshl_b32 s5, s5, 19')
        e(f's_lshl_b32 s6, s36, 1'); e(f's_add_u32 s6, s6, s{39 if isV else 40}'); e(f's_lshl_b32 s6, s6, 15'); e('s_add_u32 s5, s5, s6')
        r=0
        for o8 in range(8):
            for o4 in range(4):
                    i,s,j=(o8>>1,o8&1,o4) if isV else ((o8&1)*2+(o4>>1),o4&1,o8>>1)
                    t=8+12*(r%8); r+=1
                    for q in range(8): e(f'v_accvgpr_read_b32 v{t+q}, a{16*(i*4+j)+8*s+q}')
                    for q in range(4): e(f'v_cvt_pk_bf16_f32 v{t+8+q}, v{t+2*q}, v{t+2*q+1}')
                    e(f'buffer_store_dwordx4 {R("v",t+8,4)}, v1, s[{so}:{so+3}], s5 offen offset:{o4*1024}{SK}')
            e(f's_add_u32 s5, s5, 4096')
        if not isV: fin()
    end(n,512,256)

RM=os.environ.get('RM','op')
def p_gemm(n,nwg,per,A,B,nst,nslot,srds,tile,epi,rounds):
    begin(n,nwg)
    l=[srd(*x) for x in srds]
    e('s_and_b32 s5, s2, 7'); e(f's_mul_i32 s5, s5, {per}'); e('s_lshr_b32 s6, s2, 3'); e('s_add_u32 s5, s5, s6')
    e('s_mul_i32 s36, s5, 0xaaab'); e('s_lshr_b32 s36, s36, 18'); e('s_mul_i32 s6, s36, 6'); e('s_sub_u32 s37, s5, s6')
    if n[:2] in RM:
        e('s_lshr_b32 s5, s2, 3'); e('s_mul_i32 s36, s5, 0x5556'); e('s_lshr_b32 s36, s36, 16'); e('s_mul_i32 s6, s36, 3'); e('s_sub_u32 s37, s5, s6')
        e('s_bfe_u32 s5, s2, 0x20001'); e('s_lshl_b32 s5, s5, 3'); e('s_add_u32 s36, s36, s5'); e('s_and_b32 s5, s2, 1'); e('s_mul_i32 s5, s5, 3'); e('s_add_u32 s37, s37, s5')
    tile()
    slotb=A.bytes+B.bytes
    if A.KST==128:
        v=4
        for o,sp in ((A,45),(B,47)):
            e(f's_mul_i32 s{sp}, s3, {o.nd//4}'); e(f's_lshl_b32 s{sp+1}, s{sp}, 10'); o.nks=2; o.pages=[0,1,2]
            v=o.dma_setup(v,range(o.nd//4),f's{sp}',1,2,3)
        srd_fin(l)
        def mid():
            w=v
            for o in (A,B):
                if o.kind=='kc': e('s_lshl_b32 s42, s3, 6'); o.sks='s42'; w=o.rd_setup(w,'0',1,2,3)
                else: e(f's_mul_i32 s42, s3, {2048 if o.kind=="fm" else 64*o.N}'); w=o.rd_setup(w,'s42',1,2,3)
            assert w<=32
        gemm_loop(A,B,nst,nslot,slotb,0,A.bytes,'s46','s48',32,True,1,mid)
    else:
        for o in (A,B): e(f's_mul_i32 s5, s3, {o.kadv}'); e(f's_add_u32 s{o.soff}, s{o.soff}, s5')
        e(f's_mul_i32 s42, s3, {slotb*nslot}')
        v=A.dma_setup(4,range(A.nd),None,1,2,3); v=B.dma_setup(v,range(B.nd),None,1,2,3)
        srd_fin(l)
        def mid(): w=A.rd_setup(v,'s42',1,2,3); w=B.rd_setup(w,'s42',1,2,3); assert w<=32
        gemm_loop(A,B,nst,nslot,slotb,0,A.bytes,'s42','s42',32,False,4,mid)
    if rounds==0: epi(); end(n,256+16*A.nb*B.nb,256); return
    nbr=A.nb//rounds; RW=32*nbr; cs=RW*4+16; wb=cs*32*B.nb; cpc=RW//8
    e(f'v_and_b32 v1, 31, v0'); e(f'v_mul_u32_u24 v1, {cs}, v1'); e('v_lshrrev_b32 v2, 5, v0'); e('v_lshl_add_u32 v1, v2, 4, v1')
    e(f's_mul_i32 s5, s3, {wb}'); e('v_add_u32 v1, s5, v1')
    e('v_lshl_add_u32 v2, s3, 6, v0')
    for k in range(3):
        e(f'v_add_u32 v3, {256*k}, v2')
        if cpc==12: e(f'v_mul_u32_u24 v{4+k}, 0x5556, v3'); e(f'v_lshrrev_b32 v{4+k}, 18, v{4+k}'); e(f'v_mul_u32_u24 v{8+k}, 12, v{4+k}'); e(f'v_sub_u32 v{8+k}, v3, v{8+k}')
        else: e(f'v_lshrrev_b32 v{4+k}, 3, v3'); e(f'v_and_b32 v{8+k}, 7, v3')
        e(f'v_mul_u32_u24 v{12+k}, {cs}, v{4+k}'); e(f'v_lshl_add_u32 v{12+k}, v{8+k}, 5, v{12+k}')
    e(f'v_add_u32 v15, {2*wb}, v12'); e(f'v_add_u32 v16, {2*wb}, v13'); e(f'v_add_u32 v17, {2*wb}, v14')
    for r in range(rounds):
        epi(r,'load')
        e('s_barrier')
        for i in range(nbr):
            for j in range(B.nb):
                for q in range(4): e(f'ds_write_b128 v1, {R("a",16*((r*nbr+i)*B.nb+j)+4*q,4)} offset:{j*32*cs+i*128+q*32}')
        e('s_waitcnt lgkmcnt(0)'); e('s_barrier')
        for k in range(3):
            for w in range(4):
                for hh in range(2): e(f'ds_read_b128 {R("v",64+32*k+8*w+4*hh,4)}, v{12+k+3*(w>>1)} offset:{(w&1)*wb+16*hh}')
        for k in range(3):
            e(f's_waitcnt lgkmcnt({min(15,8*(2-k))})')
            b=64+32*k
            for q in range(8): e(f'v_add_f32 v{b+q}, v{b+q}, v{b+8+q}'); e(f'v_add_f32 v{b+16+q}, v{b+16+q}, v{b+24+q}')
            for q in range(8): e(f'v_add_f32 v{b+q}, v{b+q}, v{b+16+q}')
            if k==0: e('s_waitcnt vmcnt(0)')
            epi(r,k)
    end(n,256+16*A.nb*B.nb,256)

def unpk(d,s):
    for q in range(4): e(f'v_lshlrev_b32 v{d+2*q}, 16, v{s+q}'); e(f'v_and_b32 v{d+2*q+1}, 0xffff0000, v{s+q}')
def res_epi(sres,sout,sbias):
    def epi(r,k):
        if k=='load':
            e('s_mul_i32 s5, s36, 73728'); e('s_mul_i32 s6, s37, 192'); e('s_add_u32 s5, s5, s6'); e('s_lshl_b32 s6, s36, 7')
            for k in range(3):
                e(f'v_mul_u32_u24 v{20+k}, 1152, v{4+k}'); e(f'v_lshl_add_u32 v{20+k}, v{8+k}, 4, v{20+k}')
                e(f'buffer_load_dwordx4 {R("v",32+4*k,4)}, v{20+k}, s[{sres}:{sres+3}], s5 offen')
                if sbias: e(f'v_lshlrev_b32 v3, 1, v{4+k}'); e(f'buffer_load_ushort v{24+k}, v3, s[{sbias}:{sbias+3}], s6 offen')
            return
        b=64+32*k
        if sbias:
            for q in range(4): e(f'v_cvt_pk_bf16_f32 v{b+8+q}, v{b+2*q}, v{b+2*q+1}')
            unpk(b,b+8); e(f'v_lshlrev_b32 v{24+k}, 16, v{24+k}')
            for q in range(8): e(f'v_add_f32 v{b+q}, v{b+q}, v{24+k}')
        for q in range(4): e(f'v_cvt_pk_bf16_f32 v{b+8+q}, v{b+2*q}, v{b+2*q+1}')
        unpk(b,b+8); unpk(b+16,32+4*k)
        for q in range(8): e(f'v_add_f32 v{b+q}, v{b+q}, v{b+16+q}')
        for q in range(4): e(f'v_cvt_pk_bf16_f32 v{b+8+q}, v{b+2*q}, v{b+2*q+1}')
        e(f'buffer_store_dwordx4 {R("v",b+8,4)}, v{20+k}, s[{sout}:{sout+3}], s5 offen{SA}')
    return epi
def k_oproj():
    A=Op('tr',96,128,192,8,43,3,perm=True); B=Op('fm',64,128,262144,12,44,2)
    def tile(): e('s_mul_i32 s43, s37, 786432'); e('s_lshl_b32 s44, s36, 19')
    p_gemm('op_kernel',192,24,A,B,32,4,[(8,13,WOP,4096*1152),(12,13,CTX,1<<24),(16,0,0,SZ_X),(20,13,HB,SZ_X)],tile,res_epi(16,20,None),1)
def k_w2():
    A=Op('fm',96,128,294912,8,43,3); B=Op('tr',64,128,4096,12,44,2,perm=True)
    def tile(): e('s_mul_i32 s43, s37, 884736'); e('s_lshl_b32 s44, s36, 7')
    p_gemm('w2_kernel',192,24,A,B,36,4,[(8,13,UB,576*9216),(12,9,0,4608*4096),(16,13,HB,SZ_X),(20,11,0,SZ_X),(24,10,0,4096)],tile,res_epi(16,20,24),1)
def k_w1():
    A=Op('tr',128,16,9216,8,43,4); B=Op('tr',96,16,192,12,44,3)
    def tile(): e('s_lshl_b32 s43, s36, 8'); e('s_mul_i32 s44, s37, 393216')
    c1=-2*0.7978845608028654*1.4426950408889634
    def epi():
        e('s_lshl_b32 s6, s36, 8'); e('s_lshl_b32 s5, s3, 6'); e('s_add_u32 s6, s6, s5'); e('v_lshrrev_b32 v3, 5, v0'); e('v_lshlrev_b32 v3, 3, v3')
        for q in range(4): e(f'buffer_load_dwordx2 {R("v",8+2*q,2)}, v3, s[16:19], s6 offen offset:{16*q}')
        e('v_lshlrev_b32 v1, 4, v0'); e('s_mul_i32 s5, s3, 36864'); e('v_add_u32 v2, s5, v1'); e(f's_mov_b32 s7, {fhex(c1)}')
        e('s_mul_i32 s5, s37, 884736'); e('s_lshl_b32 s6, s36, 13'); e('s_add_u32 s5, s5, s6'); e('s_lshl_b32 s6, s3, 11'); e('s_add_u32 s5, s5, s6')
        e('v_add_u32 v4, 65536, v1'); e('v_add_u32 v5, 131072, v1'); e('s_barrier')
        for w in range(4):
            if w<3: e(f's_cmp_eq_u32 s3, {w}'); e(f's_cbranch_scc0 w1_e{w+1}')
            for o in range(4):
                for q in range(12):
                    if o!=w: a=(o*3+((w-o-1)&3))*12288+q*1024; e(f'ds_write_b128 v{(1,4,5)[a>>16]}, {R("a",48*o+4*q,4)} offset:{a&65535}')
            for q in range(48): e(f'v_accvgpr_read_b32 v{32+q}, a{48*w+q}')
            if w<3: e('s_branch w1_e'); e(f'w1_e{w+1}:')
        e('w1_e:'); e('s_waitcnt vmcnt(0) lgkmcnt(0)'); e('s_barrier')
        for g in range(6):
            for k in range(6): e(f'ds_read_b128 {R("v",80+24*g+4*k,4)}, v2 offset:{(k>>1)*12288+(2*g+(k&1))*1024}')
            if g==0: unpk(16,8); unpk(24,12)
        for g in range(6):
            b=32+8*g; t=80+24*g
            e(f's_waitcnt lgkmcnt({min(15,30-6*g)})')
            for q in range(8): e(f'v_add_f32 v{b+q}, v{b+q}, v{t+q}'); e(f'v_add_f32 v{t+8+q}, v{t+8+q}, v{t+16+q}')
            for q in range(8): e(f'v_add_f32 v{b+q}, v{b+q}, v{t+8+q}')
            for q in range(4): e(f'v_cvt_pk_bf16_f32 v{t+q}, v{b+2*q}, v{b+2*q+1}')
            unpk(b,t)
            for q in range(8): e(f'v_add_f32 v{b+q}, v{b+q}, v{16+8*(g&1)+q}')
            for q in range(8): e(f'v_mul_f32 v{t+q}, v{b+q}, v{b+q}')
            for q in range(8): e(f'v_mul_f32 v{t+q}, {fhex(c1*0.044715)}, v{t+q}')
            for q in range(8): e(f'v_add_f32 v{t+q}, s7, v{t+q}')
            for q in range(8): e(f'v_mul_f32 v{t+q}, v{t+q}, v{b+q}')
            for q in range(8): e(f'v_exp_f32 v{t+q}, v{t+q}')
            for q in range(8): e(f'v_add_f32 v{t+q}, 1.0, v{t+q}')
            for q in range(8): e(f'v_rcp_f32 v{t+q}, v{t+q}')
            for q in range(8): e(f'v_mul_f32 v{b+q}, v{b+q}, v{t+q}')
            for q in range(4): e(f'v_cvt_pk_bf16_f32 v{t+q}, v{b+2*q}, v{b+2*q+1}')
            e(f'buffer_store_dwordx4 {R("v",t,4)}, v1, s[20:23], s5 offen offset:{(g&1)*1024}{SA}')
            if g&1: e('s_add_u32 s5, s5, 294912')
    p_gemm('w1_kernel',216,27,A,B,32,5,[(8,7,0,2048*9216),(12,13,HN,SZ_X),(16,8,0,9216),(20,13,UB,576*9216)],tile,epi,0)
def k_ln():
    n='ln_kernel'; begin(n,256)
    l=[srd(8,13,HB,SZ_X),srd(12,13,HN,SZ_X)]
    e('s_lshl_b32 s47, s2, 3'); e('s_lshl_b32 s5, s3, 2'); e('s_add_u32 s47, s47, s5')
    srd_fin(l); ln_rows(8,12,'s47',4,True,tmaj=True); end(n,64,64)
```

```python
from g0 import *
SB=[96,160]; PP=64; CN=32; FP=224; LEAD=int(os.environ.get('LEAD',6)); XE=int(os.environ.get('XE',26)); BI=int(os.environ.get('BI',27)); PF=int(os.environ.get('PF',1))
MR=[26,3]; VE=int(os.environ.get('VE',2))
def kread(i,slot): kb,s=i>>3,i&7; return f'ds_read_b128 {R("v",FP+4*(i%8),4)}, v4 offset:{slot*16384+i*1024}'
def vread(i,slot): ks,db=(i-16)>>2,i&3; return f'ds_read_b128 {R("v",FP+4*(i%8),4)}, v4 offset:{16384+slot*16384+i*1024}'
def qk(i,x,S,z=False): kb,s=i>>3,i&7; d=R("v",S+32*x+16*kb,16); return f'v_mfma_f32_32x32x16_bf16 {d}, {R("v",FP+4*(i%8),4)}, {R("a",128+32*x+4*s,4)}, {d if s else "0" if z else R("v",CN+16*x,16)}'
def pv(i,x): ks,db=(i-16)>>2,i&3; d=R("a",64*x+16*db,16); return f'v_mfma_f32_32x32x16_bf16 {d}, {R("v",FP+4*(i%8),4)}, {R("v",PP+16*x+4*ks,4)}, {d}'
def expseq(S):
    o=[];tail=[]
    for ks in range(4):
        for q in range(0,8,2):
            for x in range(2):
                r=S+32*x+8*ks+q
                o+=[f'v_exp_f32 v{r}, v{r}',f'v_exp_f32 v{r+1}, v{r+1}']+tail
                tail=[f'v_add_f32 v{24+x}, v{24+x}, v{r}',f'v_cvt_pk_bf16_f32 v{PP+16*x+4*ks+q//2}, v{r}, v{r+1}',f'v_add_f32 v{24+x}, v{24+x}, v{r+1}']
    return o+['s_nop 0']+tail
def maxw(S,n):
    o=[f'v_max3_f32 v27, v{S}, v{S+1}, v{S+2}',f'v_max3_f32 v28, v{S+3}, v{S+4}, v{S+5}']
    for q in range(6,n-2,4): o+=[f'v_max3_f32 v27, v27, v{S+q}, v{S+q+1}',f'v_max3_f32 v28, v28, v{S+q+2}, v{S+q+3}']
    return o+[f'v_max3_f32 v27, v27, v{S+n-2}, v{S+n-1}','v_max_f32 v27, v27, v28']
SWAPMAX=['v_mov_b32 v28, v27','s_nop 1','v_permlane32_swap_b32 v28, v27','s_nop 1','v_max_f32 v27, v27, v28']
def maskw(S):
    e(f'v_mov_b32 v28, {fhex(-1e9)}'); e('v_add_u32 v27, 32, v29')
    for g in range(0,64,4):
        for q in range(4):
            r=(g+q)&31; e(f'v_cmp_gt_i32 s[{52+2*q}:{53+2*q}], {32*(r>>4)+8*((r&15)>>2)+(r&3)}, v{27 if g>>5 else 29}')
        for q in range(4): e(f'v_cndmask_b32 v{S+g+q}, v{S+g+q}, v28, s[{52+2*q}:{53+2*q}]')
def dma(kind,slot):
    vb,sr,so,off,adv,mid=(5,16,45,slot*16384,32768,4096) if kind=='K' else (5,20,46,32768+slot*16384,32768,4096)
    o=[]
    for n in range(8):
        o+=[([] if n&3 else [f's_add_u32 m0, s49, {off+n*1024}',f's_add_u32 s{so}, s{so}, {mid}' if n==4 else 's_nop 0'])+[f'buffer_load_dwordx4 v{vb}, s[{sr}:{sr+3}], s{so} offen offset:{(n&3)*1024} lds']]
    o[7].append(f's_add_u32 s{so}, s{so}, {hex((adv-mid)&0xffffffff)}')
    return o
def em(gs):
    for g in gs:
        for y in g: e(y)
def cdma(kind,slot,a=0,b=8,pad=None):
    c=47 if kind=='K' else 48; x=lab()
    e(f's_cmp_lt_i32 s{c}, 1'); e(f's_cbranch_scc1 {x}'); em(dma(kind,slot)[a:b]); e(f'{x}:')
    if b==8: e(f's_sub_u32 s{c}, s{c}, 1')
def split(l,n): return [l[(i*len(l))//n:((i+1)*len(l))//n] for i in range(n)]
def kvorg(): e('s_lshl_b32 s5, s36, 19'); e('s_lshl_b32 s6, s38, 14'); e('s_add_u32 s45, s5, s6'); e('s_mov_b32 s46, s45')
NO=os.environ.get('NO','')
def iteration(p,tail):
    n0=len(L); iteration_(p,tail)
    if tail: return
    k={'x':('v_exp','v_add_f32','v_cvt'),'r':('ds_read',),'b':('s_barrier',),'d':('buffer_load_dwordx4',),'e':('v_exp',),'w':('s_waitcnt lgkm','s_waitcnt vmcnt'),'m':('v_max',)}
    L[n0:]=[y for y in L[n0:] if not any(y.startswith(k[c]) for c in NO)]
def iteration_(p,tail):
    Sc,Sn=SB[p],SB[p^1]
    ex=expseq(Sc); fill={i:[] for i in range(64)}
    nxt=LEAD; start=0
    if tail:
        for i in range(16,16+LEAD): e(vread(i,p))
        e(f's_movk_i32 s58, {32768+(p^1)*16384-65536}'); e('s_cmp_eq_u32 s41, 1'); e(f's_cbranch_scc1 at_t{p}')
        kvorg(); em(dma('K',0)+dma('K',1))
        for q in range(16): e(f'ds_read_b128 {R("a",128+4*q,4)}, v31 offset:{(q&3)*1024+((q>>2)&1)*16384+(q>>3)*4096}')
        e('s_waitcnt lgkmcnt(0)'); e(f'at_t{p}:')
        for y in ex[:42]: e(y)
        start=16; nxt=16+LEAD
        for i,g in enumerate(split(ex[42:],22)): fill[32+i]=g
    else:
        for i,g in enumerate(split(ex,2*XE)): fill[i]=g
        for i,g in enumerate(split(maxw(Sn,64),18)): fill[44+i]=fill[44+i]+g
        fill[62]=[f'v_cmp_lt_f32 vcc, {fhex(TH)}, v27']
    for i in range(start,32):
        if i<=BI: e(f's_waitcnt lgkmcnt({max(0,nxt-i-1)})')
        for x in range(2):
            e(qk(i,x,Sn) if i<16 else pv(i,x))
            if x==0 and nxt<32: e(kread(nxt,p^1) if nxt<16 else vread(nxt,p)); nxt+=1
            if i==21 and x and not tail:
                y=lab(); e('s_cmp_lg_u32 s40, 2'); e(f's_cbranch_scc1 {y}'); maskw(Sn); e(f'{y}:')
            if i==BI and x:
                e('s_waitcnt lgkmcnt(0)' if tail else 's_waitcnt vmcnt(1) lgkmcnt(0)')
                if not tail:
                    e('s_barrier')
                    for j in range(BI-23): e(kread(j,p))
            if BI<i<24+LEAD and x and not tail: e(kread(i-24,p))
            if i>=28 and not tail:
                j=(i-28)*2+x
                if VE: cdma('K',p^1,j,j+1)
                else: cdma('KV'[j>>2],p if j>>2 else p^1,(j&3)*2,(j&3)*2+2)
            if VE and not tail and (2*i+x)%VE==0 and (2*i+x)//VE<8: em(dma('V',p^1)[(2*i+x)//VE:][:1])
            if i==BI-1 and x and not tail: e(f'buffer_load_dword a192, v2, s[{8+4*p}:{11+4*p}], s{60+p} offen'); e(f's_add_u32 s{60+p}, s{60+p}, 16384'); e(f's_min_u32 s{60+p}, s{60+p}, s62')
            for y in fill[2*i+x]: e(y)
    if not tail: e(f's_cbranch_vccnz at_rs{p}'); e(f'at_rb{p}:')
def rescale(p):
    Sn=SB[p^1]; e(f'at_rs{p}:')
    for x in range(2):
        for y in maxw(Sn+32*x,32)+SWAPMAX: e(y)
        e('v_max_f32 v27, 0, v27'); e(f'v_add_f32 v{MR[x]}, v{MR[x]}, v27'); e('v_sub_f32 v28, 0, v27'); e('v_exp_f32 v28, v28')
        for q in range(32): e(f'v_sub_f32 v{Sn+32*x+q}, v{Sn+32*x+q}, v27')
        for q in range(16): e(f'v_sub_f32 v{CN+16*x+q}, 0, v{MR[x]}')
        e(f'v_mul_f32 v{24+x}, v{24+x}, v28')
        for g in range(64*x,64*x+64,4):
            for q in range(4): e(f'v_accvgpr_read_b32 v{PP+q}, a{g+q}')
            for q in range(4): e(f'v_mul_f32 v{PP+q}, v{PP+q}, v28')
            for q in range(4): e(f'v_accvgpr_write_b32 a{g+q}, v{PP+q}')
    e('s_nop 1'); e(f's_branch at_rb{p}')
def k_attn():
    n='at_kernel'; begin(n,256)
    l=[srd(8,13,XN,SZ_X),srd(12,2,0,576*8192),srd(16,13,KB,1<<24),srd(20,13,VT,1<<24),srd(24,13,CTX,1<<24)]
    e('s_and_b32 s5, s2, 7'); e('s_lshr_b32 s6, s2, 6'); e('s_lshl_b32 s5, s5, 2'); e('s_add_u32 s36, s5, s6')
    e('s_bfe_u32 s51, s2, 0x30003'); e('s_sub_u32 s37, 15, s51'); e('s_mov_b32 s41, 2')
    e('s_lshr_b32 s38, s3, 1'); e('s_and_b32 s39, s3, 1')
    e('s_lshl_b32 s5, s38, 16'); e('s_lshl_b32 s6, s39, 13'); e('s_add_u32 s49, s5, s6')
    e('s_lshl_b32 s50, s3, 12'); e('s_lshl_b32 s60, s3, 2'); e('s_lshl_b32 s61, s39, 3'); e('s_lshl_b32 s62, s38, 1')
    X=Op('kc',128,64,1152,8,43,2); W=Op('tr',128,64,8192,12,44,2); X.pages=[0,1]; W.pages=[1,2]; W.sbx='s62'
    e('s_mul_i32 s43, s51, 147456'); e('s_lshl_b32 s44, s36, 8'); e('s_sub_u32 s6, s37, s51'); e('s_mul_i32 s7, s6, 147456')
    v=X.dma_setup(36,range(4),'s60',1,2,3); v=W.dma_setup(v,range(4),'s60',1,2,3)
    for q in range(4): e(f'v_add_u32 v{32+q}, s7, v{36+q}')
    srd_fin(l)
    so=[(1,5,4),(2,6,9),(3,7,8)]
    def qissue(t):
        a,b,c=so[t%3]; X.vd=32; g=X.dmas('s50',a*16384); X.vd=36
        return g+X.dmas('s50',b*16384)+W.dmas('s50',c*16384)+[[f's_add_u32 s43, s43, {X.kadv}',f's_add_u32 s44, s44, {W.kadv}']]
    for t in range(3): em(qissue(t))
    e('v_lshlrev_b32 v30, 4, v0'); e('v_add_u32 v4, s5, v30'); e('v_lshl_add_u32 v5, s39, 13, v30')
    e('v_and_b32 v1, 31, v0'); e('v_lshrrev_b32 v2, 5, v0'); e('v_lshl_add_u32 v29, s39, 6, v1')
    e('v_lshlrev_b32 v2, 2, v2'); e('v_sub_u32 v29, v29, v2'); e('s_lshl_b32 s5, s38, 6'); e('v_subrev_u32 v29, s5, v29')
    kvorg()
    e('s_lshl_b32 s5, s39, 13'); v=X.rd_setup(v,'s5',1,2,3); v=W.rd_setup(v,'0',1,2,3); assert v<=64
    def qrd(t,ks,st): a,b,c=so[t%3]; f=64+24*st; return W.reads(c*16384,ks,f)+X.reads(a*16384,ks,f+8)+X.reads(b*16384,ks,f+16)
    e('s_waitcnt vmcnt(24)'); e('s_barrier'); stamp(1); em(qrd(0,0,0))
    for t in range(9):
        for ks in range(4):
            st=ks&1; f=64+24*st; dm=[]
            e('s_waitcnt lgkmcnt(0)')
            if ks==3:
                if t<8: e(f's_waitcnt vmcnt({16 if t==7 else 12})')
                e('s_barrier'); rds=qrd(t+1,0,st^1) if t<8 else []
            else: rds=qrd(t,ks+1,st^1)
            tt=t if ks==3 else t-1
            d=[] if tt<0 else qissue(tt+3) if tt<6 else dma('K',0)+dma('K',1) if tt==6 else dma('V',0) if tt==7 else []
            if ks!=2: dm=split(d,3)[(ks+1)&3]
            m=[f'v_mfma_f32_32x32x16_bf16 {R("a",32*x+16*b,16)}, {R("v",f+4*b,4)}, {R("v",f+8+4*x,4)}, {"0" if t==0 and ks==0 else R("a",32*x+16*b,16)}' for x in range(4) for b in range(2)]
            interleave(m[:4],rds); interleave(m[4:],dm)
    l=[srd(8,7,0,2048*9216),srd(12,9,0,2048*9216)]
    e('v_lshlrev_b32 v1, 4, v0'); e('s_lshl_b32 s5, s3, 13'); e('s_add_u32 s5, s5, 131072'); e('v_add_u32 v2, s5, v1')
    e('s_lshl_b32 s5, s39, 13'); e('s_add_u32 s6, s5, 131072'); e('v_add_u32 v31, s6, v1'); e('s_add_u32 s6, s5, 49152'); e('v_add_u32 v3, s6, v1')
    e('v_add_u32 v32, 65536, v3'); e('s_add_u32 s6, s49, 49152'); e('v_add_u32 v1, s6, v1')
    e(f's_mov_b32 s5, {fhex(128**-0.5*1.4426950408889634)}'); e('s_nop 5')
    for x in range(4):
        for q in range(32): e(f'v_accvgpr_read_b32 v{64+q}, a{32*x+q}')
        for q in range(32): e(f'v_mul_f32 v{64+q}, s5, v{64+q}')
        for q in range(16): e(f'v_cvt_pk_bf16_f32 v{96+16*x+q}, v{64+2*q}, v{65+2*q}')
        for q in range(4): e(f'ds_write_b128 v{1+(x>>1)}, {R("v",96+16*x+4*q,4)} offset:{q*1024+(x&1)*4096}')
    srd_fin(l); e('s_mul_i32 s61, s2, 73728'); e('s_add_u32 s62, s61, 69632'); e('s_add_u32 s61, s61, s50'); e('s_mov_b32 s60, s61')
    e('s_waitcnt vmcnt(16)'); e('s_barrier')
    for q in range(16): e(f'ds_read_b128 {R("a",128+4*q,4)}, v{32 if (q>>2)&1 else 3} offset:{(q&3)*1024+(q>>3)*4096}')
    e('at_blk:')
    e('s_add_u32 s40, s37, 1'); e('s_sub_u32 s47, s37, 1'); e('s_mov_b32 s48, s37')
    for i in range(8): e(kread(i,0))
    e('v_mov_b32 v24, 0'); e('v_mov_b32 v25, 0'); e('v_lshlrev_b32 v2, 6, v0')
    for i in range(16):
        e(f's_waitcnt lgkmcnt({min(6,15-i) if i>=1 else 7})'); e(qk(i,0,SB[0],True))
        if 1<=i<9: e(kread(i+7,0))
        for q in range(4): e(f'v_accvgpr_write_b32 a{8*i+q}, 0')
        e(qk(i,1,SB[0],True))
        for q in range(4,8): e(f'v_accvgpr_write_b32 a{8*i+q}, 0')
    e('s_waitcnt vmcnt(0)'); e('s_barrier')
    for j in range(LEAD): e(kread(j,1))
    VE or cdma('V',1); cdma('K',0); e('s_nop 2')
    x=lab(); e('s_cmp_lg_u32 s40, 1'); e(f's_cbranch_scc1 {x}'); maskw(SB[0]); e(f'{x}:')
    for x in range(2):
        for y in maxw(SB[0]+32*x,32)+SWAPMAX: e(y)
        e(f'v_mov_b32 v{MR[x]}, v27')
        for q in range(32): e(f'v_sub_f32 v{SB[0]+32*x+q}, v{SB[0]+32*x+q}, v27')
        for q in range(16): e(f'v_sub_f32 v{CN+16*x+q}, 0, v27')
    if TS: e('s_cmp_eq_u32 s41, 2'); e('s_cbranch_scc1 at_f1'); stamp(5); e('s_branch at_loop'); e('at_f1:'); stamp(2)
    e('at_loop:')
    for p in range(2):
        e('s_cmp_eq_u32 s40, 1'); e(f's_cbranch_scc1 at_tail{p}')
        iteration(p,False); e('s_sub_u32 s40, s40, 1')
    e('s_branch at_loop')
    rescale(0); rescale(1)
    e('at_tail1:'); iteration(1,True); e('s_branch at_merge')
    e('at_tail0:'); iteration(0,True)
    e('at_merge:')
    if TS: e('s_cmp_eq_u32 s41, 2'); e('s_cbranch_scc1 at_f2'); stamp(6); e('s_branch at_f3'); e('at_f2:'); stamp(3); e('at_f3:')
    e('v_mov_b32 v27, v24'); e('v_mov_b32 v28, v25'); e('v_mov_b32 v34, v26'); e('v_mov_b32 v35, v3'); e('v_permlane32_swap_b32 v27, v24'); e('v_permlane32_swap_b32 v28, v25'); e('s_nop 1'); e('v_add_f32 v32, v24, v27'); e('v_add_f32 v33, v25, v28')
    e('v_lshlrev_b32 v1, 4, v0'); e('s_lshl_b32 s5, s3, 10'); e('s_add_u32 s5, s5, s58'); e('s_add_u32 s5, s5, 65536'); e('v_add_u32 v2, s5, v1'); e('s_xor_b32 s5, s5, 2048'); e('v_add_u32 v3, s5, v1')
    e('ds_write_b128 v2, v[32:35]'); e('s_waitcnt lgkmcnt(0)'); e('s_barrier'); e('ds_read_b128 v[36:39], v3')
    e('s_lshl_b32 s5, s39, 13'); e('s_add_u32 s5, s5, s49'); e('s_add_u32 s5, s5, 32768'); e('v_add_u32 v2, s5, v1'); e('s_xor_b32 s5, s5, 65536'); e('v_add_u32 v3, s5, v1')
    e('s_lshl_b32 s5, s37, 20'); e('s_lshl_b32 s6, s36, 13'); e('s_add_u32 s5, s5, s6'); e('s_lshl_b32 s6, s38, 12'); e('s_add_u32 s5, s5, s6'); e('s_lshl_b32 s6, s39, 19'); e('s_add_u32 s5, s5, s6'); e('s_add_u32 s6, s5, 262144')
    e('s_waitcnt lgkmcnt(0)'); e('s_barrier')
    for x in range(2):
        e(f'v_max_f32 v27, v{34+x}, v{38+x}'); e(f'v_sub_f32 v{34+x}, v{34+x}, v27'); e(f'v_sub_f32 v{38+x}, v{38+x}, v27'); e(f'v_exp_f32 v{34+x}, v{34+x}'); e(f'v_exp_f32 v{38+x}, v{38+x}'); e('s_nop 0')
        e(f'v_mul_f32 v{24+x}, v{32+x}, v{34+x}'); e(f'v_fmac_f32 v{24+x}, v{36+x}, v{38+x}'); e(f'v_rcp_f32 v{24+x}, v{24+x}'); e('s_nop 0'); e(f'v_mul_f32 v{24+x}, v{24+x}, v{34+x}')
    e('s_cmp_eq_u32 s38, 1'); e('s_cbranch_scc1 at_m1')
    for hh in range(2):
        if hh: e('at_m1:')
        for g in range(0,64,8):
            for q in range(g,g+8): e(f'v_accvgpr_read_b32 v{64+q}, a{64*(q>>5)+32*(1-hh)+(q&31)}')
            for q in range(g,g+8): e(f'v_mul_f32 v{64+q}, v{64+q}, v{24+(q>>5)}')
            for q in range(2): e(f'ds_write_b128 v2, {R("v",64+g+4*q,4)} offset:{(g//4+q)*1024}')
        for q in range(64): e(f'v_accvgpr_read_b32 v{128+q}, a{64*(q>>5)+32*hh+(q&31)}')
        if not hh: e('s_branch at_m2')
    e('at_m2:')
    e('s_waitcnt lgkmcnt(0)'); e('s_barrier')
    for q in range(16): e(f'ds_read_b128 {R("v",64+4*q,4)}, v3 offset:{q*1024}')
    for g in range(8):
        e(f's_waitcnt lgkmcnt({14-2*g})')
        for q in range(8): e(f'v_fmac_f32 v{64+8*g+q}, v{128+8*g+q}, v{24+(g>>2)}')
        for q in range(4): e(f'v_cvt_pk_bf16_f32 v{192+4*g+q}, v{64+8*g+2*q}, v{65+8*g+2*q}')
        e(f'buffer_store_dwordx4 {R("v",192+4*g,4)}, v30, s[24:27], s{5+(g>>2)} offen offset:{(g&3)*1024}{SA}')
    e('s_sub_u32 s41, s41, 1'); e('s_cmp_eq_u32 s41, 0'); e('s_cbranch_scc1 at_end')
    e('s_mov_b32 s37, s51'); e('s_waitcnt vmcnt(8)'); e('s_barrier'); stamp(4)
    em(dma('V',0)); e('s_branch at_blk')
    e('at_end:')
    end(n,456,256)
```
